```python
import torch

def _softmax(x, axis=-1):
    return torch.softmax(x, dim=axis)
def _gelu(x):
    return torch.nn.functional.gelu(x, approximate="tanh")
def _silu(x):
    return torch.nn.functional.silu(x)
def _sigmoid(x):
    return torch.sigmoid(x)
def _layernorm(x, axis=-1, eps=1e-5):
    m = x.mean(dim=axis, keepdim=True)
    v = x.var(dim=axis, keepdim=True, unbiased=False)
    return (x - m) / torch.sqrt(v + eps)
def _scatter_add(tgt, idx, src, axis=0):
    return tgt.clone().index_add_(axis, idx, src)
def _segment_sum(src, seg, n):
    out = torch.zeros((n,) + src.shape[1:], dtype=src.dtype)
    return out.index_add_(0, seg, src)
def _pad(x, pw):
    flat = tuple(v for pair in reversed(pw) for v in pair)
    return torch.nn.functional.pad(x, flat)

kernel_name = 'concat_heads__gqa_block_cached__gqa_block_cached__near_ridge'

def setup_inputs():

    _w = (lambda a: (lambda t: t.to(torch.bfloat16) if t.is_floating_point() else t)(torch.as_tensor(a)))
    def _A_setup():
        B, Sq, D = 8, 112, 512
        Hq, Hkv, Sk, Dh = 32, 32, 512, 128
        assert Hq % Hkv == 0, (Hq, Hkv)
        return {
            "x": _w((lambda *s: torch.randn(*s, dtype=torch.bfloat16) * 0.8)(B, Sq, D)),
            "k_cache": _w((lambda *s: torch.randn(*s, dtype=torch.bfloat16) * 0.8)(B, Hkv, Sk, Dh)),
            "v_cache": _w((lambda *s: torch.randn(*s, dtype=torch.bfloat16) * 0.05)(B, Hkv, Sk, Dh)),
            "wq": _w((lambda *s: torch.randn(*s, dtype=torch.bfloat16) * 0.8)(D, Hq * Dh) * (D ** -0.5)),
            "wo": _w((lambda *s: torch.randn(*s, dtype=torch.bfloat16) * 0.05)(Hq * Dh, D) * ((Hq * Dh) ** -0.5)),
        }
    _A_in = _A_setup()

    def _B_setup():
        B, Sq, D = 8, 112, 512
        Hq, Hkv, Sk, Dh = 32, 32, 512, 128
        assert Hq % Hkv == 0, (Hq, Hkv)
        return {
            "x": _w((lambda *s: torch.randn(*s, dtype=torch.bfloat16) * 0.8)(B, Sq, D)),
            "k_cache": _w((lambda *s: torch.randn(*s, dtype=torch.bfloat16) * 0.8)(B, Hkv, Sk, Dh)),
            "v_cache": _w((lambda *s: torch.randn(*s, dtype=torch.bfloat16) * 0.05)(B, Hkv, Sk, Dh)),
            "wq": _w((lambda *s: torch.randn(*s, dtype=torch.bfloat16) * 0.8)(D, Hq * Dh) * (D ** -0.5)),
            "wo": _w((lambda *s: torch.randn(*s, dtype=torch.bfloat16) * 0.05)(Hq * Dh, D) * ((Hq * Dh) ** -0.5)),
        }
    _B_in = _B_setup()

    return {
        "A_x": _A_in["x"],
        "A_k_cache": _A_in["k_cache"],
        "A_v_cache": _A_in["v_cache"],
        "A_wq": _A_in["wq"],
        "A_wo": _A_in["wo"],
        "B_x": _B_in["x"],
        "B_k_cache": _B_in["k_cache"],
        "B_v_cache": _B_in["v_cache"],
        "B_wq": _B_in["wq"],
        "B_wo": _B_in["wo"],
    }

def reference(A_x, A_k_cache, A_v_cache, A_wq, A_wo, B_x, B_k_cache, B_v_cache, B_wq, B_wo):
    def _A_ref(x, k_cache, v_cache, wq, wo):
        B, Sq, D = x.shape
        Hq, Dh = 32, 128
        Hkv = k_cache.shape[1]
        rep = Hq // Hkv
        q = (lambda x, *d: x.permute(*d))((x @ wq).reshape(B, Sq, Hq, Dh), 0, 2, 1, 3)
        k = (lambda x, n, axis: torch.repeat_interleave(x, n, dim=axis))(k_cache, rep, axis=1)
        v = (lambda x, n, axis: torch.repeat_interleave(x, n, dim=axis))(v_cache, rep, axis=1)
        scores = torch.einsum("bhqd,bhkd->bhqk", q, k) * (Dh ** -0.5)
        p = _softmax(scores, axis=-1)
        o = torch.einsum("bhqk,bhkd->bhqd", p, v)
        return (lambda x, *d: x.permute(*d))(o, 0, 2, 1, 3).reshape(B, Sq, Hq * Dh) @ wo

    def _B_ref(x, k_cache, v_cache, wq, wo):
        B, Sq, D = x.shape
        Hq, Dh = 32, 128
        Hkv = k_cache.shape[1]
        rep = Hq // Hkv
        q = (lambda x, *d: x.permute(*d))((x @ wq).reshape(B, Sq, Hq, Dh), 0, 2, 1, 3)
        k = (lambda x, n, axis: torch.repeat_interleave(x, n, dim=axis))(k_cache, rep, axis=1)
        v = (lambda x, n, axis: torch.repeat_interleave(x, n, dim=axis))(v_cache, rep, axis=1)
        scores = torch.einsum("bhqd,bhkd->bhqk", q, k) * (Dh ** -0.5)
        p = _softmax(scores, axis=-1)
        o = torch.einsum("bhqk,bhkd->bhqd", p, v)
        return (lambda x, *d: x.permute(*d))(o, 0, 2, 1, 3).reshape(B, Sq, Hq * Dh) @ wo

    a = _A_ref(A_x, A_k_cache, A_v_cache, A_wq, A_wo)
    b = _B_ref(B_x, B_k_cache, B_v_cache, B_wq, B_wo)
    return torch.concatenate([a, b], axis=-1)
```

```python
import re
KN = "concat_heads__gqa_block_cached__gqa_block_cached__near_ridge"
HEADER = open("cdna_kernels/%s.s.ref" % KN).read().split("; Override launch")[0]

def vr(a, n=1):
    return f"v{a}" if n == 1 else f"v[{a}:{a+n-1}]"
def sr(a, n=1):
    return f"s{a}" if n == 1 else f"s[{a}:{a+n-1}]"

TRANS = ("v_exp_f32", "v_log_f32", "v_rcp_f32", "v_rsq_f32", "v_sqrt_f32", "v_sin_f32", "v_cos_f32")
_reg_re = re.compile(r"^(-|\|)?(v|s|a)(\d+)\|?$")
_rng_re = re.compile(r"^(-)?(v|s|a)\[(\d+):(\d+)\]$")

def regs_of(tok):
    tok = tok.strip()
    m = _reg_re.match(tok)
    if m: return [(m.group(2), int(m.group(3)))]
    m = _rng_re.match(tok)
    if m: return [(m.group(2), i) for i in range(int(m.group(3)), int(m.group(4)) + 1)]
    if tok in ("vcc", "vcc_lo", "vcc_hi"): return [("vcc", 0)]
    if tok == "m0": return [("m0", 0)]
    if tok in ("exec", "exec_lo", "exec_hi"): return [("exec", 0)]
    if tok == "scc": return [("scc", 0)]
    return []

def mfma_passes(op):
    if "32x32x16" in op or "32x32x8" in op: return 8
    if "16x16x32" in op or "16x16x16" in op: return 4
    raise ValueError(op)

class Ins:
    def __init__(self, text):
        self.text = text
        t = text.split(";")[0].strip()
        parts = t.split(None, 1)
        self.op = parts[0]
        rest = parts[1] if len(parts) > 1 else ""
        ops = [o.strip() for o in rest.split(",")] if rest else []
        self.mods = ""
        if ops:
            last = ops[-1].split(None, 1)
            ops[-1] = last[0]
            self.mods = last[1] if len(last) > 1 else ""
        self.ops = ops
        op = self.op
        self.kind = "other"; self.dst = []; self.src = []; self.srcC = []
        R = [regs_of(o) for o in ops]
        flat = lambda L: [r for x in L for r in x]
        if op.startswith("v_mfma"):
            self.kind = "mfma"; self.dst = R[0]; self.srcAB = R[1] + R[2]; self.srcC = R[3]; self.src = self.srcAB + self.srcC
            self.passes = mfma_passes(op)
        elif op.startswith("v_"):
            self.kind = "valu"
            if op.startswith("v_permlane") and "swap" in op:
                self.dst = R[0] + R[1]; self.src = R[0] + R[1]; self.kind2 = "permlane"
            elif op.startswith("v_cmp"):
                self.dst = R[0]; self.src = flat(R[1:])
            elif op.startswith("v_readfirstlane") or op.startswith("v_readlane"):
                self.dst = R[0]; self.src = flat(R[1:])
            else:
                self.dst = R[0]; self.src = flat(R[1:])
                if op.startswith("v_fmac") or op.startswith("v_mac"): self.src += R[0]
                if op.startswith("v_cndmask") and len(ops) == 3: self.src += [("vcc", 0)]
                if "_co_" in op:
                    self.dst = R[0] + R[1]; self.src = flat(R[2:])
        elif op.startswith("ds_read"):
            self.kind = "ds"; self.dst = R[0]; self.src = flat(R[1:])
        elif op.startswith("ds_"):
            self.kind = "ds"; self.src = flat(R)
        elif op.startswith("buffer_load") or op.startswith("global_load"):
            self.kind = "vmem"
            if " lds" in (" " + self.mods) or "_lds_" in op:
                self.src = flat(R) + [("m0", 0)]; self.ldsdma = True
            else:
                self.dst = R[0]; self.src = flat(R[1:])
        elif op.startswith("buffer_store") or op.startswith("global_store"):
            self.kind = "vmem"; self.src = flat(R); self.store = True
            self.wide = ("x4" in op or "x3" in op); self.data = R[0] if op.startswith("buffer") else R[1]
        elif op.startswith("buffer_atomic") or op.startswith("global_atomic"):
            self.kind = "vmem"; self.src = flat(R)
            if "sc0" in self.mods: self.dst = R[0]
        elif op.startswith("buffer_") :
            self.kind = "vmem"
        elif op.startswith("s_"):
            self.kind = "salu"
            if op in ("s_nop", "s_waitcnt", "s_barrier", "s_branch", "s_endpgm", "s_setprio", "s_sleep") or op.startswith("s_cbranch") or op.startswith("s_cmp"):
                self.src = flat(R)
            elif op.startswith("s_load") or op.startswith("s_buffer_load") or op.startswith("s_memrealtime") or op.startswith("s_memtime"):
                self.kind = "smem"; self.dst = R[0]; self.src = flat(R[1:])
            else:
                self.dst = R[0]; self.src = flat(R[1:])
        else:
            raise ValueError("unknown op " + text)
    def states(self):
        if self.op == "s_nop": return int(self.ops[0]) + 1
        return 1

class Asm:
    def __init__(self, hazards=True):
        self.l = []
        self.nlab = 0
        self.hz = hazards
        self.pos = 0
        self.ev = {}
        self.nops = 0
        self.vm = []
        self.lg = []
    def raw(self, s): self.l.append(s)
    def comment(self, s): self.l.append("    ; " + s)
    def label(self, base="L"):
        self.nlab += 1
        return f"{base}_{self.nlab}"
    def _need(self, key, dist):
        p = self.ev.get(key)
        if p is None: return 0
        return max(0, dist - (self.pos - p - 1))
    def _emit(self, text):
        I = Ins(text)
        need = 0
        if self.hz:
            k = I.kind
            if k == "mfma":
                for r in I.src: need = max(need, self._need(("valu_w", r), 2))
                for r in I.srcAB:
                    need = max(need, self._need(("mfma8_w", r), 12), self._need(("mfma4_w", r), 8))
                cset = tuple(I.srcC)
                for r in I.srcC:
                    for nm, d in (("mfma8_w", 10), ("mfma4_w", 6)):
                        if self.ev.get((nm, r)) is not None and self.ev.get((nm + "_set", r)) != cset:
                            need = max(need, self._need((nm, r), d))
                for r in I.dst:
                    for nm, d in (("mfma8_w", 10), ("mfma4_w", 6)):
                        if self.ev.get((nm, r)) is not None and self.ev.get((nm + "_set", r)) != cset:
                            need = max(need, self._need((nm, r), d))
                need = max(need, self._need(("valu_w", ("exec", 0)), 4))
            if k in ("valu", "ds", "vmem"):
                for r in I.src + I.dst:
                    need = max(need, self._need(("mfma8_w", r), 12), self._need(("mfma4_w", r), 8))
            if k == "valu":
                for r in I.dst:
                    need = max(need, self._need(("mfma8_c", r), 7), self._need(("mfma4_c", r), 3))
                    need = max(need, self._need(("wstore", r), 2))
                if I.op not in TRANS or True:
                    for r in I.src: need = max(need, self._need(("trans_w", r), 1))
                for r in I.src:
                    if r[0] in ("s", "vcc"): need = max(need, self._need(("valu_w", r), 2))
                if getattr(I, "kind2", "") == "permlane":
                    for r in I.src: need = max(need, self._need(("valu_w", r), 2))
                if I.op.startswith("v_readfirstlane") or I.op.startswith("v_readlane"):
                    for r in I.src: need = max(need, self._need(("valu_w", r), 1))
            if k in ("ds", "vmem"):
                for r in I.dst: need = max(need, self._need(("wstore", r), 1))
            if k == "vmem":
                for r in I.src:
                    if r[0] in ("s", "vcc"): need = max(need, self._need(("valu_w", r), 5))
                if getattr(I, "ldsdma", False): need = max(need, self._need(("salu_w", ("m0", 0)), 1))
        while need > 0:
            n = min(need, 16)
            self.l.append(f"    s_nop {n-1}")
            self.pos += n; need -= n; self.nops += 1
        p = self.pos
        if I.kind == "valu":
            for r in I.dst:
                self.ev[("valu_w", r)] = p
                if I.op in TRANS: self.ev[("trans_w", r)] = p
                else: self.ev.pop(("trans_w", r), None)
                self.ev.pop(("mfma8_w", r), None); self.ev.pop(("mfma4_w", r), None)
        elif I.kind == "mfma":
            nm = "mfma8" if I.passes == 8 else "mfma4"
            for r in I.dst:
                self.ev[(nm + "_w", r)] = p; self.ev[(nm + "_w_set", r)] = tuple(I.dst)
            for r in I.srcC: self.ev[(nm + "_c", r)] = p
        elif I.kind == "salu":
            for r in I.dst: self.ev[("salu_w", r)] = p
        elif I.kind == "vmem" and getattr(I, "store", False) and I.wide:
            for r in I.data: self.ev[("wstore", r)] = p
        self.l.append("    " + text)
        self.pos += I.states()
    def __call__(self, s=""):
        for x in s.split("\n"):
            x = x.strip()
            if x == "": continue
            if x.endswith(":") or x.startswith(".") :
                self.l.append(x)
            elif x.startswith(";"):
                self.l.append("    " + x)
            else:
                self._emit(x)
    def opt_begin(self): self._opt = self.pos
    def opt_end(self):
        d = self.pos - self._opt
        for k, v in list(self.ev.items()):
            if isinstance(v, int) and v < self._opt: self.ev[k] = v + d
    def fence(self, n=16):
        while n > 0:
            m = min(n, 16); self.l.append(f"    s_nop {m-1}"); self.pos += m; n -= m
    def vm_issue(self, tag, text):
        self(text); self.vm.append(tag)
    def vm_wait(self, tags, extra=""):
        if not isinstance(tags, (list, set)): tags = [tags]
        idx = [i for i, t in enumerate(self.vm) if t in tags]
        if not idx: return False
        n = len(self.vm) - 1 - max(idx)
        assert n <= 63, n
        self(f"s_waitcnt vmcnt({n}){extra}")
        self.vm = self.vm[max(idx) + 1:]
        return True
    def lg_issue(self, tag, text):
        self(text); self.lg.append(tag)
    def lg_wait(self, tags):
        if not isinstance(tags, (list, set)): tags = [tags]
        idx = [i for i, t in enumerate(self.lg) if t in tags]
        if not idx: return False
        n = len(self.lg) - 1 - max(idx)
        assert n <= 15, n
        self(f"s_waitcnt lgkmcnt({n})")
        self.lg = self.lg[max(idx) + 1:]
        return True
    def text(self):
        return "\n".join(self.l) + "\n"

def kernel_begin(A, name):
    A.raw(f".globl {name}\n.p2align 8\n.type {name},@function\n{name}:")

def kernel_desc(name, vgpr=256, sgpr=102, accum=None):
    if accum is None: accum = min(256, (vgpr + 3) // 4 * 4)
    return f""".amdhsa_kernel {name}
  .amdhsa_next_free_vgpr {vgpr}
  .amdhsa_next_free_sgpr {sgpr}
  .amdhsa_accum_offset {accum}
  .amdhsa_group_segment_fixed_size 0
  .amdhsa_kernarg_size 104
  .amdhsa_user_sgpr_count 2
  .amdhsa_user_sgpr_kernarg_segment_ptr 1
  .amdhsa_system_sgpr_workgroup_id_x 1
.end_amdhsa_kernel
"""

def build_file(launches, body, descs):
    s = HEADER
    s += "; Override launch geometry by editing the next line (default: block=256,\n; grid=ceil(out_elems/256), lds=0). Harness parses it; keep it on one line.\n"
    for (k, g, b, lds) in launches:
        kk = f"kernel={k} " if k else ""
        s += f"; @launch {kk}grid=({g[0]},{g[1]},{g[2]}) block=({b[0]},{b[1]},{b[2]}) lds={lds}\n"
    s += '.amdgcn_target "amdgcn-amd-amdhsa--gfx950"\n.text\n'
    s += body
    s += '.section .rodata,"a"\n.p2align 6\n'
    for d in descs:
        s += d
        s += ".p2align 6\n"
    return s
```

```python
import sys, math
from asmlib import *

class Cfg:
    nt_kv = True
    lazy = True
    T = 8.0
    prio = False

CSCALE = (128 ** -0.5) * math.log2(math.e)
import struct
def f2u(x): return struct.unpack("<I", struct.pack("<f", x))[0]

vKrd = 2
vVrd = 10
vKdma = 14
vVdma = 18
vM = 19
vL = 20
vT = 21
vMC = 28
vO = 32
vQ = 96
vS = 128
vP = 160
vF = 176
vXdma = vP
vWdma = vP + 4
vXrd = vP + 6
vWrd = vP + 10
vXf = vS
sK, sV, sX, sW, sO = 4, 8, 12, 16, 20
sWave = 24; sW4096 = 25; sW2048 = 26; sTmp = 27; sTmp2 = 28; sC = 30; sThr = 31
SLOT = 16384
PERM = [4, 0, 2, 1, 3]
def slot_of(n): return PERM[n % 5]

def gen_k1(A, cfg, name):
    kernel_begin(A, name)
    Lend = "K1_END"
    nt = " nt" if cfg.nt_kv else ""
    A(f"""
    s_cmp_ge_u32 s2, 512
    s_cbranch_scc1 {Lend}
    s_load_dwordx4 s[36:39], s[0:1], 0      ; A_x, A_k
    s_load_dwordx4 s[40:43], s[0:1], 16     ; A_v, A_wq
    s_load_dwordx4 s[44:47], s[0:1], 40     ; B_x, B_k
    s_load_dwordx4 s[48:51], s[0:1], 56     ; B_v, B_wq
    s_load_dwordx2 s[52:53], s[0:1], 96     ; ws
    v_lshrrev_b32 v1, 6, v0
    v_and_b32 v0, 63, v0                    ; lane
    v_readfirstlane_b32 s{sWave}, v1
    s_and_b32 s54, s2, 7
    s_lshr_b32 s55, s2, 3
    s_lshr_b32 s56, s55, 5                  ; br
    s_lshl_b32 s54, s54, 2
    s_and_b32 s57, s55, 3
    s_add_u32 s54, s54, s57                 ; h
    s_lshr_b32 s55, s55, 2
    s_and_b32 s55, s55, 7                   ; b
    s_lshl_b32 s{sW4096}, s{sWave}, 12
    s_lshl_b32 s{sW2048}, s{sWave}, 11
    s_mov_b32 s{sC}, {hex(f2u(CSCALE))}
    s_mov_b32 s{sThr}, {hex(f2u(cfg.T / CSCALE))}
    """)
    t0, t1, t2, t3 = vT, vT + 1, vT + 2, vT + 3
    A(f"""
    v_and_b32 v{t0}, 31, v0                 ; m
    v_lshrrev_b32 v{t1}, 5, v0              ; hl
    v_and_b32 v{t2}, 15, v0
    v_xor_b32 v{t2}, v{t2}, v{t1}
    v_lshlrev_b32 v{t2}, 4, v{t2}
    v_lshl_add_u32 v{vKrd}, v{t0}, 8, v{t2}
    """)
    for t in range(1, 8):
        A(f"v_xor_b32 v{vKrd+t}, {32*t}, v{vKrd}")
    A(f"""
    v_lshrrev_b32 v{t2}, 1, v{t0}
    v_and_b32 v{t2}, 7, v{t2}
    v_xor_b32 v{t2}, v{t2}, v{t1}
    v_lshlrev_b32 v{t2}, 4, v{t2}
    v_lshl_add_u32 v{t2}, v{t0}, 7, v{t2}
    v_add_u32 v{vXrd}, s{sW4096}, v{t2}
    """)
    for u in range(1, 4):
        A(f"v_xor_b32 v{vXrd+u}, {32*u}, v{vXrd}")
    A(f"""
    v_lshrrev_b32 v{t0}, 2, v0
    v_and_b32 v{t0}, 3, v{t0}               ; r
    v_lshrrev_b32 v{t2}, 4, v0
    v_and_b32 v{t2}, 1, v{t2}               ; G&1
    v_lshlrev_b32 v{t2}, 5, v{t2}           ; 32*(G&1)
    v_lshl_add_u32 v{t2}, v{t0}, 8, v{t2}   ; + r*256
    v_lshl_add_u32 v{t2}, v{t0}, 6, v{t2}   ; + 64*r   (j = 0 : 64*(0^r))
    v_and_b32 v{t3}, 3, v0                  ; c
    v_lshl_add_u32 v{vVrd}, v{t3}, 3, v{t2} ; + 8c
    v_lshl_add_u32 v{vVrd}, v{t1}, 10, v{vVrd} ; + 4*hl*256
    v_and_b32 v{t3}, 1, v0
    v_lshl_add_u32 v{vWrd}, v{t3}, 4, v{t2} ; + 16*(c&1)
    v_lshrrev_b32 v{t3}, 1, v0
    v_and_b32 v{t3}, 1, v{t3}
    v_lshl_add_u32 v{vWrd}, v{t3}, 3, v{vWrd} ; + 8*(c>>1)
    v_lshl_add_u32 v{vWrd}, v{t1}, 11, v{vWrd} ; + 8*hl*256
    """)
    for j in range(1, 4):
        A(f"v_xor_b32 v{vVrd+j}, {64*j}, v{vVrd}")
        A(f"v_xor_b32 v{vWrd+j}, {64*j}, v{vWrd}")
    A(f"""
    v_lshrrev_b32 v{t0}, 4, v0              ; g
    v_and_b32 v{t1}, 15, v0                 ; p
    v_xor_b32 v{t2}, v{t1}, v{t0}           ; p ^ g
    v_lshlrev_b32 v{t2}, 4, v{t2}
    v_lshl_add_u32 v{t2}, v{t0}, 8, v{t2}   ; + g*256
    v_add_u32 v{vKdma}, s{sW4096}, v{t2}
    v_lshlrev_b32 v{t2}, 2, v{t0}           ; 4g
    v_xor_b32 v{t2}, v{t1}, v{t2}           ; p ^ 4g
    v_lshlrev_b32 v{t2}, 4, v{t2}           ; *16
    v_lshl_add_u32 v{t3}, v{t0}, 8, v{t2}   ; + g*256
    v_add_u32 v{vVdma}, s{sW4096}, v{t3}
    v_lshl_add_u32 v{t3}, v{t0}, 13, v{t2}  ; g*8192 + swz
    s_lshl_b32 s{sTmp}, s{sWave}, 16        ; 8w*8192
    v_add_u32 v{vWdma}, s{sTmp}, v{t3}
    v_add_u32 v{vWdma+1}, {4*8192-1024}, v{vWdma}
    """)
    for j in range(1, 4):
        A(f"v_xor_b32 v{vKdma+j}, {64*j}, v{vKdma}")
    A(f"""
    v_lshrrev_b32 v{t2}, 3, v0              ; L>>3
    v_lshlrev_b32 v{t2}, 10, v{t2}
    s_lshl_b32 s{sTmp}, s{sWave}, 15        ; 32w*1024
    v_add_u32 v{t2}, s{sTmp}, v{t2}
    v_and_b32 v{t1}, 7, v0
    v_xor_b32 v{t1}, v{t1}, v{t0}           ; (L&7) ^ (L>>4)
    v_lshl_add_u32 v{vXdma}, v{t1}, 4, v{t2}
    v_xor_b32 v{vXdma+1}, 64, v{vXdma}
    v_add_u32 v{vXdma+1}, 7168, v{vXdma+1}
    v_add_u32 v{vXdma+2}, {2*7168}, v{vXdma}
    v_add_u32 v{vXdma+3}, {2*7168}, v{vXdma+1}
    """)
    A(f"""
    s_waitcnt lgkmcnt(0)
    s_cmp_eq_u32 s56, 0
    s_cselect_b32 s36, s36, s44
    s_cselect_b32 s37, s37, s45
    s_cselect_b32 s38, s38, s46
    s_cselect_b32 s39, s39, s47
    s_cselect_b32 s40, s40, s48
    s_cselect_b32 s41, s41, s49
    s_cselect_b32 s42, s42, s50
    s_cselect_b32 s43, s43, s51
    ; x: base + b*114688
    s_mul_i32 s58, s55, 114688
    s_add_u32 s{sX}, s36, s58
    s_addc_u32 s{sX+1}, s37, 0
    s_mov_b32 s{sX+2}, 114688
    s_mov_b32 s{sX+3}, 0x00020000
    s_lshl_b32 s58, s54, 8
    s_add_u32 s{sW}, s42, s58
    s_addc_u32 s{sW+1}, s43, 0
    s_mov_b32 s{sW+2}, {511*8192+256}
    s_mov_b32 s{sW+3}, 0x00020000
    ; k, v: base + (b*32+h)*131072
    s_lshl_b32 s58, s55, 5
    s_add_u32 s58, s58, s54
    s_lshl_b32 s59, s58, 17
    s_add_u32 s{sK}, s38, s59
    s_addc_u32 s{sK+1}, s39, 0
    s_mov_b32 s{sK+2}, 131072
    s_mov_b32 s{sK+3}, 0x00020000
    s_add_u32 s{sV}, s40, s59
    s_addc_u32 s{sV+1}, s41, 0
    s_mov_b32 s{sV+2}, 131072
    s_mov_b32 s{sV+3}, 0x00020000
    s_lshl_b32 s59, s56, 8
    s_add_u32 s58, s58, s59
    s_lshl_b32 s58, s58, 15
    s_add_u32 s{sO}, s52, s58
    s_addc_u32 s{sO+1}, s53, 0
    s_mov_b32 s{sO+2}, 32768
    s_mov_b32 s{sO+3}, 0x00020000
    """)
    nst = [0]
    def stamp():
        if not getattr(cfg, "stamps", False): return
        A("s_memrealtime s[60:61]")
        A("s_waitcnt lgkmcnt(0)")
        A(f"s_mov_b32 s{62+nst[0]}, s60")
        nst[0] += 1
    stamp()
    XB = [0, 16384]; WB = [32768, 40960, 49152, 57344]
    def issue_x(S):
        A(f"s_add_u32 m0, s{sW4096}, {XB[S & 1]}")
        A(f"s_movk_i32 s{sTmp}, {128 * S}")
        for j in range(4):
            A.vm_issue(("x", S), f"buffer_load_dwordx4 v{vXdma+j}, s[{sX}:{sX+3}], s{sTmp} offen offset:{1024*j} lds")
    def issue_w(s):
        A(f"s_add_u32 m0, s{sW2048}, {WB[s & 3]}")
        A(f"s_mov_b32 s{sTmp}, {s * 262144}")
        for j in range(2):
            A.vm_issue(("w", s), f"buffer_load_dwordx4 v{vWdma+j}, s[{sW}:{sW+3}], s{sTmp} offen offset:{1024*j} lds")
    def issue_tile(n):
        A(f"s_add_u32 m0, s{sW4096}, {slot_of(n) * SLOT}")
        A(f"s_movk_i32 s{sTmp}, {(n >> 1) * 16384}" if (n >> 1) * 16384 < 32768 else f"s_mov_b32 s{sTmp}, {(n >> 1) * 16384}")
        for j in range(4):
            if n & 1 == 0:
                A.vm_issue(("t", n), f"buffer_load_dwordx4 v{vKdma+j}, s[{sK}:{sK+3}], s{sTmp} offen offset:{1024*j}{nt} lds")
            else:
                A.vm_issue(("t", n), f"buffer_load_dwordx4 v{vVdma}, s[{sV}:{sV+3}], s{sTmp} offen offset:{1024*j}{nt} lds")
    if getattr(cfg, "warm", True):
        t0, t1, t2 = vT, vT + 1, vT + 2
        A(f"""
        s_lshl_b32 s58, s55, 6                  ; 64 b
        s_lshl_b32 s59, s{sWave}, 4             ; 16 w
        s_add_u32 s58, s58, s59
        s_lshl_b32 s58, s58, 13                 ; *8192
        v_lshrrev_b32 v{t0}, 2, v0
        v_lshlrev_b32 v{t0}, 13, v{t0}
        v_and_b32 v{t1}, 3, v0
        v_lshl_add_u32 v{t0}, v{t1}, 6, v{t0}
        s_and_b32 s59, s54, 3                   ; hq
        s_mul_i32 s59, s59, {28*1024}
        s_lshl_b32 s60, s{sWave}, 13
        s_add_u32 s59, s59, s60
        v_lshrrev_b32 v{t1}, 3, v0
        v_lshlrev_b32 v{t1}, 10, v{t1}
        v_and_b32 v{t2}, 7, v0
        v_lshl_add_u32 v{t1}, v{t2}, 7, v{t1}
        """)
        A.vm_issue("pf", f"buffer_load_dword v{vF}, v{t0}, s[{sW}:{sW+3}], s58 offen")
        A.vm_issue("pf", f"buffer_load_dword v{vF+1}, v{t1}, s[{sX}:{sX+3}], s59 offen")
    issue_x(0); issue_w(0); issue_w(1); issue_x(1); issue_w(2); issue_tile(0)
    for s in range(16):
        S = s >> 1
        tags = [("w", s)] + ([("x", S)] if s % 2 == 0 else [])
        A.vm_wait(tags)
        A("s_barrier")
        if s in (0, 4, 8, 12): stamp()
        if s + 3 <= 15: issue_w(s + 3)
        if s == 13: issue_tile(1)
        if s == 14: issue_tile(2)
        if s == 15: issue_tile(3)
        if s % 2 == 0:
            for u in range(4):
                A.lg_issue(("xf", u), f"ds_read_b128 v[{vXf+4*u}:{vXf+4*u+3}], v{vXrd+u} offset:{XB[S & 1]}")
        frs = [(u, j) for u in range(2) for j in range(4)]
        def rd(i):
            u, j = frs[i]
            for sh in range(2):
                off = WB[s & 3] + (16 * u + 4 * sh) * 256
                A.lg_issue(("wf", i), f"ds_read_b64_tr_b16 v[{vF+4*i+2*sh}:{vF+4*i+2*sh+1}], v{vWrd+j} offset:{off}")
        for i in range(4): rd(i)
        if s % 2 == 0:
            A.lg_wait([("xf", u) for u in range(4)])
            if S + 2 <= 7: issue_x(S + 2)
        for i in range(8):
            u, j = frs[i]
            if i + 4 < 8: rd(i + 4)
            A.lg_wait(("wf", i))
            xi = 2 * (s & 1) + u
            c = "0" if (s == 0 and u == 0) else f"v[{vO+16*j}:{vO+16*j+15}]"
            A(f"v_mfma_f32_32x32x16_bf16 v[{vO+16*j}:{vO+16*j+15}], v[{vF+4*i}:{vF+4*i+3}], v[{vXf+4*xi}:{vXf+4*xi+3}], {c}")
    for j in range(4):
        for r in range(0, 16, 2):
            A(f"v_cvt_pk_bf16_f32 v{vQ + 8*j + r//2}, v{vO+16*j+r}, v{vO+16*j+r+1}")
    if getattr(cfg, "dumpq", False):
        A(f"v_lshlrev_b32 v{vT+1}, 4, v0")
        A(f"s_lshl_b32 s{sTmp}, s{sWave}, 13")
        A(f"v_add_u32 v{vT+1}, s{sTmp}, v{vT+1}")
        A(f"v_add_u32 v{vT+2}, 4096, v{vT+1}")
        for t in range(8):
            A(f"buffer_store_dwordx4 v[{vQ+4*t}:{vQ+4*t+3}], v{vT+1 + (t>>2)}, s[{sO}:{sO+3}], 0 offen offset:{1024*(t&3)}")
        A("s_waitcnt vmcnt(0)")
        A("s_endpgm")
    kb = 0; vb = 0
    def rebias(base, n, cur, slot):
        want = 16384 if slot == 4 else (cur if slot != 0 else 0)
        if slot == 0: want = 0
        if want != cur:
            for i in range(n):
                A(f"v_add_u32 v{base+i}, {want-cur}, v{base+i}" if want > cur else f"v_subrev_u32 v{base+i}, {cur-want}, v{base+i}")
        return want
    for i in range(8):
        n = 2 * i
        A.vm_wait(("t", n))
        A("s_barrier")
        stamp()
        if n + 4 <= 15: issue_tile(n + 4)
        sl = slot_of(n)
        kb = rebias(vKrd, 8, kb, sl)
        base = sl * SLOT - kb
        frs = [(t, jb) for t in range(8) for jb in range(2)]
        def rdk(x):
            t, jb = frs[x]
            fi = x % 8
            A.lg_issue(("kf", x), f"ds_read_b128 v[{vF+4*fi}:{vF+4*fi+3}], v{vKrd+t} offset:{base + jb*8192}")
        for x in range(6): rdk(x)
        for x in range(16):
            t, jb = frs[x]
            if x + 6 < 16: rdk(x + 6)
            A.lg_wait(("kf", x))
            fi = x % 8
            c = "0" if t == 0 else f"v[{vS+16*jb}:{vS+16*jb+15}]"
            A(f"v_mfma_f32_32x32x16_bf16 v[{vS+16*jb}:{vS+16*jb+15}], v[{vF+4*fi}:{vF+4*fi+3}], v[{vQ+4*t}:{vQ+4*t+3}], {c}")
        a, b2 = vT, vT + 1
        A(f"v_max3_f32 v{a}, v{vS}, v{vS+1}, v{vS+2}")
        A(f"v_max3_f32 v{b2}, v{vS+16}, v{vS+17}, v{vS+18}")
        for r in range(3, 15, 2):
            A(f"v_max3_f32 v{a}, v{a}, v{vS+r}, v{vS+r+1}")
            A(f"v_max3_f32 v{b2}, v{b2}, v{vS+16+r}, v{vS+16+r+1}")
        A(f"v_max3_f32 v{a}, v{a}, v{vS+15}, v{vS+31}")
        A(f"v_max_f32 v{a}, v{a}, v{b2}")
        A(f"v_mov_b32 v{b2}, v{a}")
        A(f"v_permlane32_swap_b32 v{a}, v{b2}")
        A(f"v_max_f32 v{a}, v{a}, v{b2}")
        if i == 0:
            A(f"v_mov_b32 v{vM}, v{a}")
            A(f"v_mul_f32 v{vMC}, s{sC}, v{a}")
            A(f"v_mov_b32 v{vL}, 0")
        else:
            Lskip = A.label("K1_SKIP")
            A(f"v_sub_f32 v{b2}, v{a}, v{vM}")
            if cfg.lazy:
                A(f"v_cmp_lt_f32 vcc, s{sThr}, v{b2}")
                A(f"s_cbranch_vccz {Lskip}")
                A.opt_begin()
            A(f"v_max_f32 v{a}, v{a}, v{vM}")
            A(f"v_sub_f32 v{b2}, v{vM}, v{a}")
            A(f"v_mul_f32 v{b2}, s{sC}, v{b2}")
            A(f"v_exp_f32 v{b2}, v{b2}")
            A(f"v_mov_b32 v{vM}, v{a}")
            A(f"v_mul_f32 v{vMC}, s{sC}, v{a}")
            A(f"v_mul_f32 v{vL}, v{vL}, v{b2}")
            for r in range(64):
                A(f"v_mul_f32 v{vO+r}, v{vO+r}, v{b2}")
            if cfg.lazy:
                A.opt_end()
                A(f"{Lskip}:")
        l2 = vT + 2
        for r in range(32):
            A(f"v_fma_f32 v{vS+r}, v{vS+r}, s{sC}, -v{vMC}")
        for r in range(32):
            A(f"v_exp_f32 v{vS+r}, v{vS+r}")
        A(f"v_add_f32 v{l2}, v{vS}, v{vS+1}")
        for r in range(2, 32, 2):
            A(f"v_add_f32 v{vL}, v{vL}, v{vS+r}")
            A(f"v_add_f32 v{l2}, v{l2}, v{vS+r+1}")
            pass
        A(f"v_add_f32 v{vL}, v{vL}, v{l2}")
        for r in range(0, 32, 2):
            A(f"v_cvt_pk_bf16_f32 v{vP + r//2}, v{vS+r}, v{vS+r+1}")
        n = 2 * i + 1
        A.vm_wait(("t", n))
        A("s_barrier")
        stamp()
        if n + 4 <= 15: issue_tile(n + 4)
        sl = slot_of(n)
        vb = rebias(vVrd, 4, vb, sl)
        base = sl * SLOT - vb
        frs = [(t, j) for t in range(4) for j in range(4)]
        def rdv(x):
            t, j = frs[x]
            fi = x % 8
            for sh in range(2):
                off = base + (16 * t + 8 * sh) * 256
                A.lg_issue(("vf", x), f"ds_read_b64_tr_b16 v[{vF+4*fi+2*sh}:{vF+4*fi+2*sh+1}], v{vVrd+j} offset:{off}")
        for x in range(5): rdv(x)
        for x in range(16):
            t, j = frs[x]
            if x + 5 < 16: rdv(x + 5)
            A.lg_wait(("vf", x))
            fi = x % 8
            c = "0" if (i == 0 and t == 0) else f"v[{vO+16*j}:{vO+16*j+15}]"
            A(f"v_mfma_f32_32x32x16_bf16 v[{vO+16*j}:{vO+16*j+15}], v[{vF+4*fi}:{vF+4*fi+3}], v[{vP+4*t}:{vP+4*t+3}], {c}")
    a, b2 = vT, vT + 1
    A(f"v_mov_b32 v{a}, v{vL}")
    A(f"v_mov_b32 v{b2}, v{vL}")
    A(f"v_permlane32_swap_b32 v{a}, v{b2}")
    A(f"v_add_f32 v{a}, v{a}, v{b2}")
    A(f"v_rcp_f32 v{a}, v{a}")
    A(f"v_lshlrev_b32 v{b2}, 4, v0")
    A(f"s_lshl_b32 s{sTmp}, s{sWave}, 13")
    A(f"v_add_u32 v{b2}, s{sTmp}, v{b2}")
    for j in range(4):
        for r in range(16):
            A(f"v_mul_f32 v{vO+16*j+r}, v{vO+16*j+r}, v{a}")
        for u in range(2):
            t = 2 * j + u
            for r in range(4):
                A(f"v_cvt_pk_bf16_f32 v{vS+4*t+r}, v{vO+16*j+8*u+2*r}, v{vO+16*j+8*u+2*r+1}")
            if t < 4:
                A(f"buffer_store_dwordx4 v[{vS+4*t}:{vS+4*t+3}], v{b2}, s[{sO}:{sO+3}], 0 offen offset:{1024*t}")
            else:
                if t == 4: A(f"v_add_u32 v{vT+2}, 4096, v{b2}")
                A(f"buffer_store_dwordx4 v[{vS+4*t}:{vS+4*t+3}], v{vT+2}, s[{sO}:{sO+3}], 0 offen offset:{1024*(t-4)}")
    stamp()
    A("s_waitcnt vmcnt(0)")
    stamp()
    if getattr(cfg, "stamps", False):
        A("v_mov_b32 v1, 0")
        for i in range(nst[0]):
            A(f"v_writelane_b32 v1, s{62+i}, {i}")
        A(f"s_lshl_b32 s54, s2, 2")
        A(f"s_add_u32 s54, s54, s{sWave}")
        A(f"s_lshl_b32 s54, s54, 8")
        A(f"s_add_u32 s54, s54, {64<<20}")
        A(f"s_add_u32 s56, s52, s54")
        A(f"s_addc_u32 s57, s53, 0")
        A(f"s_mov_b32 s58, 256")
        A(f"s_mov_b32 s59, 0x00020000")
        A(f"v_lshlrev_b32 v2, 2, v0")
        A(f"buffer_store_dword v1, v2, s[56:59], 0 offen")
        A("s_waitcnt vmcnt(0)")
    A(f"{Lend}:")
    A("s_endpgm")

if __name__ == "__main__":
    cfg = Cfg()
    for a in sys.argv[2:]:
        k, v = a.split("="); setattr(cfg, k, eval(v))
    A = Asm()
    gen_k1(A, cfg, KN + "_kernel")
    open(sys.argv[1], "w").write(build_file([(None, (512, 1, 1), (256, 1, 1), 81920)], A.text(), [kernel_desc(KN + "_kernel", 208)]))
    print("nops inserted:", A.nops, "lines:", len(A.l))
```

```python
import sys, math
from asmlib import *
import gen1

PART_OFF = 32 << 20

def gen_k2(A, name, nslot=8):
    kernel_begin(A, name)
    Lend = "K2_END"
    vAcc = 32; vO = 96; vF = 160; vWrd = 2; vWdma = 6; vOad = 7; t0, t1, t2, t3 = 8, 9, 10, 11
    sW, sO, sP = 4, 8, 12
    sWave = 24; sW4096 = 25; sTmp = 27
    A(f"""
    s_cmp_ge_u32 s2, 256
    s_cbranch_scc1 {Lend}
    s_load_dwordx2 s[36:37], s[0:1], 32     ; A_wo
    s_load_dwordx2 s[38:39], s[0:1], 72     ; B_wo
    s_load_dwordx2 s[52:53], s[0:1], 96     ; ws
    v_lshrrev_b32 v1, 6, v0
    v_and_b32 v0, 63, v0                    ; lane
    v_readfirstlane_b32 s{sWave}, v1
    s_and_b32 s54, s2, 3                    ; kq
    s_lshr_b32 s55, s2, 2
    s_and_b32 s55, s55, 1                   ; br
    s_lshr_b32 s56, s2, 3
    s_and_b32 s57, s56, 3                   ; nt
    s_lshr_b32 s56, s56, 2                  ; b
    s_lshl_b32 s{sW4096}, s{sWave}, 12
    """)
    A(f"""
    v_lshrrev_b32 v{t1}, 5, v0              ; hl
    v_lshrrev_b32 v{t0}, 2, v0
    v_and_b32 v{t0}, 3, v{t0}               ; r
    v_lshrrev_b32 v{t2}, 4, v0
    v_and_b32 v{t2}, 1, v{t2}               ; G&1
    v_lshlrev_b32 v{t2}, 5, v{t2}           ; 32*(G&1)
    v_lshl_add_u32 v{t2}, v{t0}, 8, v{t2}   ; + r*256
    v_lshl_add_u32 v{t2}, v{t0}, 6, v{t2}   ; + 64*r
    v_and_b32 v{t3}, 3, v0                  ; c
    v_lshl_add_u32 v{vWrd}, v{t3}, 3, v{t2} ; + 8c
    v_lshl_add_u32 v{vWrd}, v{t1}, 10, v{vWrd} ; + 4*hl*256
    """)
    for j in range(1, 4):
        A(f"v_xor_b32 v{vWrd+j}, {64*j}, v{vWrd}")
    vWrd2 = 12
    for j in range(4):
        A(f"v_add_u32 v{vWrd2+j}, 65536, v{vWrd+j}")
    A(f"""
    v_lshrrev_b32 v{t0}, 4, v0              ; g
    v_and_b32 v{t1}, 15, v0                 ; p
    v_lshlrev_b32 v{t2}, 2, v{t0}           ; 4g
    v_xor_b32 v{t2}, v{t1}, v{t2}           ; p ^ 4g
    v_lshlrev_b32 v{t2}, 4, v{t2}
    v_lshl_add_u32 v{t2}, v{t0}, 10, v{t2}  ; + g*1024
    s_lshl_b32 s{sTmp}, s{sWave}, 14        ; 16w*1024
    v_add_u32 v{vWdma}, s{sTmp}, v{t2}
    v_lshlrev_b32 v{vOad}, 4, v0
    s_lshl_b32 s{sTmp}, s{sWave}, 13
    v_add_u32 v{vOad}, s{sTmp}, v{vOad}
    s_waitcnt lgkmcnt(0)
    s_cmp_eq_u32 s55, 0
    s_cselect_b32 s36, s36, s38
    s_cselect_b32 s37, s37, s39
    s_lshl_b32 s58, s54, 20
    s_lshl_b32 s59, s57, 8                  ; nt*256
    s_add_u32 s58, s58, s59
    s_add_u32 s{sW}, s36, s58
    s_addc_u32 s{sW+1}, s37, 0
    s_mov_b32 s{sW+2}, {1023*1024+256}
    s_mov_b32 s{sW+3}, 0x00020000
    s_lshl_b32 s58, s55, 8                  ; br*256
    s_lshl_b32 s59, s56, 5                  ; b*32
    s_add_u32 s58, s58, s59
    s_lshl_b32 s59, s54, 3                  ; 8kq
    s_add_u32 s58, s58, s59
    s_lshl_b32 s58, s58, 15
    s_add_u32 s{sO}, s52, s58
    s_addc_u32 s{sO+1}, s53, 0
    s_mov_b32 s{sO+2}, 262144
    s_mov_b32 s{sO+3}, 0x00020000
    s_lshl_b32 s58, s55, 3
    s_add_u32 s58, s58, s56
    s_lshl_b32 s58, s58, 2
    s_add_u32 s58, s58, s57
    s_lshl_b32 s58, s58, 18
    s_lshl_b32 s59, s54, 16
    s_add_u32 s58, s58, s59
    s_add_u32 s58, s58, {PART_OFF}
    s_add_u32 s{sP}, s52, s58
    s_addc_u32 s{sP+1}, s53, 0
    s_mov_b32 s{sP+2}, 65536
    s_mov_b32 s{sP+3}, 0x00020000
    """)
    def issue_w(i):
        A(f"s_add_u32 m0, s{sW4096}, {(i % nslot) * 16384}")
        for j in range(4):
            A(f"s_mov_b32 s{sTmp}, {65536 * i + 3072 * j}")
            A.vm_issue(("w", i), f"buffer_load_dwordx4 v{vWdma}, s[{sW}:{sW+3}], s{sTmp} offen offset:{1024*j} lds")
    def issue_o(hh):
        base = vO + 32 * (hh & 1)
        for half in range(2):
            A(f"s_mov_b32 s{sTmp+1}, {32768 * hh + 4096 * half}")
            for t in range(4):
                tt = 4 * half + t
                A.vm_issue(("o", hh, half), f"buffer_load_dwordx4 v[{base+4*tt}:{base+4*tt+3}], v{vOad}, s[{sO}:{sO+3}], s{sTmp+1} offen offset:{1024*t}")
    issue_o(0); issue_w(0); issue_w(1); issue_o(1)
    for i in range(2, nslot - 1): issue_w(i)
    for i in range(16):
        hh, half = i >> 1, i & 1
        A.vm_wait([("w", i), ("o", hh, half)])
        A("s_barrier")
        if i + nslot - 1 < 16: issue_w(i + nslot - 1)
        sl = i % nslot
        rd = vWrd if sl < 4 else vWrd2
        base = (sl % 4) * 16384
        frs = [(t, j) for t in range(4) for j in range(4)]
        def rdv(x):
            t, j = frs[x]
            fi = x % 8
            for sh in range(2):
                off = base + (16 * t + 8 * sh) * 256
                A.lg_issue(("vf", x), f"ds_read_b64_tr_b16 v[{vF+4*fi+2*sh}:{vF+4*fi+2*sh+1}], v{rd+j} offset:{off}")
        for x in range(5): rdv(x)
        for x in range(16):
            t, j = frs[x]
            if x + 5 < 16: rdv(x + 5)
            A.lg_wait(("vf", x))
            fi = x % 8
            c = "0" if (i == 0 and t == 0) else f"v[{vAcc+16*j}:{vAcc+16*j+15}]"
            ob = vO + 32 * (hh & 1) + 16 * half + 4 * t
            A(f"v_mfma_f32_32x32x16_bf16 v[{vAcc+16*j}:{vAcc+16*j+15}], v[{vF+4*fi}:{vF+4*fi+3}], v[{ob}:{ob+3}], {c}")
        if half == 1 and hh + 2 < 8: issue_o(hh + 2)
    A(f"v_lshlrev_b32 v{t0}, 4, v0")
    A(f"s_lshl_b32 s{sTmp}, s{sWave}, 14")
    A(f"v_add_u32 v{t0}, s{sTmp}, v{t0}")
    for j in range(4):
        A(f"s_movk_i32 s{sTmp}, {4096*j}")
        for g in range(4):
            A(f"buffer_store_dwordx4 v[{vAcc+16*j+4*g}:{vAcc+16*j+4*g+3}], v{t0}, s[{sP}:{sP+3}], s{sTmp} offen offset:{1024*g}")
    A("s_waitcnt vmcnt(0)")
    A(f"{Lend}:")
    A("s_endpgm")

def gen_k3(A, name, nsplit=4):
    kernel_begin(A, name)
    Lend = "K3_END"
    A(f"""
    s_cmp_ge_u32 s2, 1024
    s_cbranch_scc1 {Lend}
    s_load_dwordx2 s[36:37], s[0:1], 80     ; out
    s_load_dwordx2 s[52:53], s[0:1], 96     ; ws
    s_lshr_b32 s54, s2, 4
    s_and_b32 s55, s2, 15
    s_lshl_b32 s55, s55, 8
    v_add_u32 v1, s55, v0                   ; idx
    v_lshlrev_b32 v2, 4, v1
    s_waitcnt lgkmcnt(0)
    s_lshl_b32 s58, s54, 18
    s_add_u32 s58, s58, {PART_OFF}
    s_add_u32 s4, s52, s58
    s_addc_u32 s5, s53, 0
    s_mov_b32 s6, 262144
    s_mov_b32 s7, 0x00020000
    s_mov_b32 s8, s36
    s_mov_b32 s9, s37
    s_mov_b32 s10, {8*112*1024*2}
    s_mov_b32 s11, 0x00020000
    """)
    for k in range(nsplit):
        A(f"s_mov_b32 s12, {65536*k}")
        A(f"buffer_load_dwordx4 v[{8+4*k}:{8+4*k+3}], v2, s[4:7], s12 offen")
    A(f"""
    s_and_b32 s56, s54, 3                   ; nt
    s_lshr_b32 s57, s54, 2
    s_and_b32 s58, s57, 7                   ; b
    s_lshr_b32 s57, s57, 3                  ; br
    v_lshrrev_b32 v3, 10, v1                ; w
    v_and_b32 v4, 31, v1
    v_lshl_add_u32 v3, v3, 5, v4            ; q
    v_cmp_gt_u32 vcc, 112, v3
    s_mul_i32 s58, s58, 112
    v_add_u32 v3, s58, v3                   ; b*112+q
    v_lshlrev_b32 v3, 11, v3                ; *2048 B
    v_lshrrev_b32 v4, 6, v1
    v_and_b32 v4, 15, v4
    v_lshlrev_b32 v4, 4, v4                 ; 8*grp*2 B
    v_lshrrev_b32 v5, 5, v1
    v_and_b32 v5, 1, v5                     ; hl
    v_lshl_add_u32 v4, v5, 3, v4            ; + 4*hl*2
    v_add_u32 v3, v3, v4
    s_lshl_b32 s57, s57, 10                 ; br*512*2
    s_lshl_b32 s56, s56, 8                  ; nt*128*2
    s_add_u32 s56, s56, s57
    v_add_u32 v3, s56, v3
    s_and_saveexec_b64 s[14:15], vcc
    s_cbranch_execz {Lend}
    s_waitcnt vmcnt(0)
    """)
    for k in range(1, nsplit):
        for r in range(4):
            A(f"v_add_f32 v{8+r}, v{8+r}, v{8+4*k+r}")
    A("""
    v_cvt_pk_bf16_f32 v6, v8, v9
    v_cvt_pk_bf16_f32 v7, v10, v11
    buffer_store_dwordx2 v[6:7], v3, s[8:11], 0 offen
    s_waitcnt vmcnt(0)
    """)
    A(f"{Lend}:")
    A("s_endpgm")

if __name__ == "__main__":
    cfg = gen1.Cfg()
    for a in sys.argv[2:]:
        k, v = a.split("="); setattr(cfg, k, eval(v))
    A = Asm()
    gen1.gen_k1(A, cfg, "att_kernel")
    A2 = Asm(); gen_k2(A2, "proj_kernel")
    A3 = Asm(); gen_k3(A3, "red_kernel")
    body = A.text() + A2.text() + A3.text()
    L = [("att_kernel", (512, 1, 1), (256, 1, 1), 81920), ("proj_kernel", (256, 1, 1), (256, 1, 1), 131072), ("red_kernel", (1024, 1, 1), (256, 1, 1), 0)]
    open(sys.argv[1], "w").write(build_file(L, body, [kernel_desc("att_kernel", 208), kernel_desc("proj_kernel", 192), kernel_desc("red_kernel", 32)]))
```

```python
import sys, math
from asmlib import *
import gen1

PART_OFF = 32 << 20

def gen_k2(A, name, nslot=8, now=False, noo=False, nomfma=False, nobar=False, stamps=False, rep=1, nostore=False, xpat=False):
    kernel_begin(A, name)
    Lend = "K2_END"
    vAcc = 32; vO = 96; vF = 160; vWrd = 2; vWdma = 6; vOad = 7; t0, t1, t2, t3 = 8, 9, 10, 11
    sW, sO, sP = 4, 8, 12
    sWave = 24; sW4096 = 25; sTmp = 27
    A(f"""
    s_cmp_ge_u32 s2, 256
    s_cbranch_scc1 {Lend}
    s_load_dwordx2 s[36:37], s[0:1], 32     ; A_wo
    s_load_dwordx2 s[38:39], s[0:1], 72     ; B_wo
    s_load_dwordx2 s[52:53], s[0:1], 96     ; ws
    v_lshrrev_b32 v1, 6, v0
    v_and_b32 v0, 63, v0                    ; lane
    v_readfirstlane_b32 s{sWave}, v1
    s_and_b32 s54, s2, 3                    ; kq
    s_lshr_b32 s55, s2, 2
    s_and_b32 s55, s55, 1                   ; br
    s_lshr_b32 s56, s2, 3
    s_and_b32 s57, s56, 3                   ; nt
    s_lshr_b32 s56, s56, 2                  ; b
    s_lshl_b32 s{sW4096}, s{sWave}, 12
    """)
    A(f"""
    v_lshrrev_b32 v{t1}, 5, v0              ; hl
    v_lshrrev_b32 v{t0}, 2, v0
    v_and_b32 v{t0}, 3, v{t0}               ; r
    v_lshrrev_b32 v{t2}, 4, v0
    v_and_b32 v{t2}, 1, v{t2}               ; G&1
    v_lshlrev_b32 v{t2}, 5, v{t2}           ; 32*(G&1)
    v_lshl_add_u32 v{t2}, v{t0}, 8, v{t2}   ; + r*256
    v_lshl_add_u32 v{t2}, v{t0}, 6, v{t2}   ; + 64*r
    v_and_b32 v{t3}, 3, v0                  ; c
    v_lshl_add_u32 v{vWrd}, v{t3}, 3, v{t2} ; + 8c
    v_lshl_add_u32 v{vWrd}, v{t1}, 10, v{vWrd} ; + 4*hl*256
    """)
    for j in range(1, 4):
        A(f"v_xor_b32 v{vWrd+j}, {64*j}, v{vWrd}")
    vWrd2 = 12
    for j in range(4):
        A(f"v_add_u32 v{vWrd2+j}, 65536, v{vWrd+j}")
    XP = f"""v_and_b32 v{t0}, 31, v0
    v_lshlrev_b32 v{t0}, 10, v{t0}
    v_lshrrev_b32 v{t1}, 5, v0
    v_lshl_add_u32 v{t0}, v{t1}, 4, v{t0}
    s_lshl_b32 s{sTmp}, s{sWave}, 15
    v_add_u32 v{vOad}, s{sTmp}, v{t0}""" if xpat else ""
    A(f"""
    v_lshrrev_b32 v{t0}, 4, v0              ; g
    v_and_b32 v{t1}, 15, v0                 ; p
    v_lshlrev_b32 v{t2}, 2, v{t0}           ; 4g
    v_xor_b32 v{t2}, v{t1}, v{t2}           ; p ^ 4g
    v_lshlrev_b32 v{t2}, 4, v{t2}
    v_lshl_add_u32 v{t2}, v{t0}, 10, v{t2}  ; + g*1024
    s_lshl_b32 s{sTmp}, s{sWave}, 14        ; 16w*1024
    v_add_u32 v{vWdma}, s{sTmp}, v{t2}
    v_lshlrev_b32 v{vOad}, 4, v0
    s_lshl_b32 s{sTmp}, s{sWave}, 13
    v_add_u32 v{vOad}, s{sTmp}, v{vOad}
    {XP}
    s_waitcnt lgkmcnt(0)
    s_cmp_eq_u32 s55, 0
    s_cselect_b32 s36, s36, s38
    s_cselect_b32 s37, s37, s39
    s_lshl_b32 s58, s54, 20
    s_lshl_b32 s59, s57, 8                  ; nt*256
    s_add_u32 s58, s58, s59
    s_add_u32 s{sW}, s36, s58
    s_addc_u32 s{sW+1}, s37, 0
    s_mov_b32 s{sW+2}, {1023*1024+256}
    s_mov_b32 s{sW+3}, 0x00020000
    s_lshl_b32 s58, s55, 8                  ; br*256
    s_lshl_b32 s59, s56, 5                  ; b*32
    s_add_u32 s58, s58, s59
    s_lshl_b32 s59, s54, 3                  ; 8kq
    s_add_u32 s58, s58, s59
    s_lshl_b32 s58, s58, 15
    s_add_u32 s{sO}, s52, s58
    s_addc_u32 s{sO+1}, s53, 0
    s_mov_b32 s{sO+2}, 262144
    s_mov_b32 s{sO+3}, 0x00020000
    s_lshl_b32 s58, s55, 3
    s_add_u32 s58, s58, s56
    s_lshl_b32 s58, s58, 2
    s_add_u32 s58, s58, s57
    s_lshl_b32 s58, s58, 18
    s_lshl_b32 s59, s54, 16
    s_add_u32 s58, s58, s59
    s_add_u32 s58, s58, {PART_OFF}
    s_add_u32 s{sP}, s52, s58
    s_addc_u32 s{sP+1}, s53, 0
    s_mov_b32 s{sP+2}, 65536
    s_mov_b32 s{sP+3}, 0x00020000
    """)
    def issue_o_x(hh):
        base = vO + 32 * (hh & 1)
        for tt in range(8):
            A.vm_issue(("o", hh, tt >> 2), f"buffer_load_dwordx4 v[{base+4*tt}:{base+4*tt+3}], v{vOad}, s[{sO}:{sO+3}], s{sTmp+2} offen offset:{(256*hh + 32*tt) % 1024}")
    def issue_w(i):
        if now: return
        A(f"s_add_u32 m0, s{sW4096}, {(i % nslot) * 16384}")
        for j in range(4):
            A(f"s_mov_b32 s{sTmp}, {65536 * i + 3072 * j}")
            A.vm_issue(("w", i), f"buffer_load_dwordx4 v{vWdma}, s[{sW}:{sW+3}], s{sTmp} offen offset:{1024*j} lds")
    def issue_o(hh):
        if noo: return
        if xpat:
            A(f"s_mov_b32 s{sTmp+2}, {131072 * (hh >> 2)}")
            return issue_o_x(hh)
        base = vO + 32 * (hh & 1)
        for half in range(2):
            A(f"s_mov_b32 s{sTmp+1}, {32768 * hh + 4096 * half}")
            for t in range(4):
                tt = 4 * half + t
                A.vm_issue(("o", hh, half), f"buffer_load_dwordx4 v[{base+4*tt}:{base+4*tt+3}], v{vOad}, s[{sO}:{sO+3}], s{sTmp+1} offen offset:{1024*t}")
    if stamps:
        A("s_memtime s[60:61]"); A("s_memrealtime s[62:63]"); A("s_waitcnt lgkmcnt(0)")
    if rep > 1:
        A(f"s_movk_i32 s70, {rep}")
        A("K2_REP:")
    issue_o(0); issue_w(0); issue_w(1); issue_o(1)
    for i in range(2, nslot - 1): issue_w(i)
    for i in range(16):
        hh, half = i >> 1, i & 1
        A.vm_wait([("w", i), ("o", hh, half)])
        if not nobar: A("s_barrier")
        if i + nslot - 1 < 16: issue_w(i + nslot - 1)
        sl = i % nslot
        rd = vWrd if sl < 4 else vWrd2
        base = (sl % 4) * 16384
        if nomfma:
            if half == 1 and hh + 2 < 8: issue_o(hh + 2)
            continue
        frs = [(t, j) for t in range(4) for j in range(4)]
        def rdv(x):
            t, j = frs[x]
            fi = x % 8
            for sh in range(2):
                off = base + (16 * t + 8 * sh) * 256
                A.lg_issue(("vf", x), f"ds_read_b64_tr_b16 v[{vF+4*fi+2*sh}:{vF+4*fi+2*sh+1}], v{rd+j} offset:{off}")
        for x in range(5): rdv(x)
        for x in range(16):
            t, j = frs[x]
            if x + 5 < 16: rdv(x + 5)
            A.lg_wait(("vf", x))
            fi = x % 8
            c = "0" if (i == 0 and t == 0) else f"v[{vAcc+16*j}:{vAcc+16*j+15}]"
            ob = vO + 32 * (hh & 1) + 16 * half + 4 * t
            A(f"v_mfma_f32_32x32x16_bf16 v[{vAcc+16*j}:{vAcc+16*j+15}], v[{vF+4*fi}:{vF+4*fi+3}], v[{ob}:{ob+3}], {c}")
        if half == 1 and hh + 2 < 8: issue_o(hh + 2)
    if rep > 1:
        A("s_sub_u32 s70, s70, 1"); A("s_cmp_lg_u32 s70, 0"); A("s_cbranch_scc1 K2_REP")
    if stamps:
        A("s_memtime s[64:65]"); A("s_memrealtime s[66:67]"); A("s_waitcnt lgkmcnt(0)")
        A("s_sub_u32 s60, s64, s60"); A("s_sub_u32 s62, s66, s62")
        A("v_mov_b32 v1, 0"); A("v_writelane_b32 v1, s60, 0"); A("v_writelane_b32 v1, s62, 1")
        A("s_lshl_b32 s54, s2, 2"); A(f"s_add_u32 s54, s54, s{sWave}"); A("s_lshl_b32 s54, s54, 8")
        A(f"s_add_u32 s54, s54, {64<<20}"); A("s_add_u32 s56, s52, s54"); A("s_addc_u32 s57, s53, 0")
        A("s_mov_b32 s58, 256"); A("s_mov_b32 s59, 0x00020000"); A("v_lshlrev_b32 v2, 2, v0")
        A("buffer_store_dword v1, v2, s[56:59], 0 offen")
    A(f"v_lshlrev_b32 v{t0}, 4, v0")
    A(f"s_lshl_b32 s{sTmp}, s{sWave}, 14")
    A(f"v_add_u32 v{t0}, s{sTmp}, v{t0}")
    for j in range(0 if nostore else 4):
        A(f"s_movk_i32 s{sTmp}, {4096*j}")
        for g in range(4):
            A(f"buffer_store_dwordx4 v[{vAcc+16*j+4*g}:{vAcc+16*j+4*g+3}], v{t0}, s[{sP}:{sP+3}], s{sTmp} offen offset:{1024*g}")
    A("s_waitcnt vmcnt(0)")
    A(f"{Lend}:")
    A("s_endpgm")

def gen_k3(A, name, nsplit=4):
    kernel_begin(A, name)
    Lend = "K3_END"
    A(f"""
    s_cmp_ge_u32 s2, 1024
    s_cbranch_scc1 {Lend}
    s_load_dwordx2 s[36:37], s[0:1], 80     ; out
    s_load_dwordx2 s[52:53], s[0:1], 96     ; ws
    s_lshr_b32 s54, s2, 4
    s_and_b32 s55, s2, 15
    s_lshl_b32 s55, s55, 8
    v_add_u32 v1, s55, v0                   ; idx
    v_lshlrev_b32 v2, 4, v1
    s_waitcnt lgkmcnt(0)
    s_lshl_b32 s58, s54, 18
    s_add_u32 s58, s58, {PART_OFF}
    s_add_u32 s4, s52, s58
    s_addc_u32 s5, s53, 0
    s_mov_b32 s6, 262144
    s_mov_b32 s7, 0x00020000
    s_mov_b32 s8, s36
    s_mov_b32 s9, s37
    s_mov_b32 s10, {8*112*1024*2}
    s_mov_b32 s11, 0x00020000
    """)
    for k in range(nsplit):
        A(f"s_mov_b32 s12, {65536*k}")
        A(f"buffer_load_dwordx4 v[{8+4*k}:{8+4*k+3}], v2, s[4:7], s12 offen")
    A(f"""
    s_and_b32 s56, s54, 3                   ; nt
    s_lshr_b32 s57, s54, 2
    s_and_b32 s58, s57, 7                   ; b
    s_lshr_b32 s57, s57, 3                  ; br
    v_lshrrev_b32 v3, 10, v1                ; w
    v_and_b32 v4, 31, v1
    v_lshl_add_u32 v3, v3, 5, v4            ; q
    v_cmp_gt_u32 vcc, 112, v3
    s_mul_i32 s58, s58, 112
    v_add_u32 v3, s58, v3                   ; b*112+q
    v_lshlrev_b32 v3, 11, v3                ; *2048 B
    v_lshrrev_b32 v4, 6, v1
    v_and_b32 v4, 15, v4
    v_lshlrev_b32 v4, 4, v4                 ; 8*grp*2 B
    v_lshrrev_b32 v5, 5, v1
    v_and_b32 v5, 1, v5                     ; hl
    v_lshl_add_u32 v4, v5, 3, v4            ; + 4*hl*2
    v_add_u32 v3, v3, v4
    s_lshl_b32 s57, s57, 10                 ; br*512*2
    s_lshl_b32 s56, s56, 8                  ; nt*128*2
    s_add_u32 s56, s56, s57
    v_add_u32 v3, s56, v3
    s_and_saveexec_b64 s[14:15], vcc
    s_cbranch_execz {Lend}
    s_waitcnt vmcnt(0)
    """)
    for k in range(1, nsplit):
        for r in range(4):
            A(f"v_add_f32 v{8+r}, v{8+r}, v{8+4*k+r}")
    A("""
    v_cvt_pk_bf16_f32 v6, v8, v9
    v_cvt_pk_bf16_f32 v7, v10, v11
    buffer_store_dwordx2 v[6:7], v3, s[8:11], 0 offen
    s_waitcnt vmcnt(0)
    """)
    A(f"{Lend}:")
    A("s_endpgm")

if __name__ == "__main__":
    cfg = gen1.Cfg()
    for a in sys.argv[2:]:
        k, v = a.split("="); setattr(cfg, k, eval(v))
    A = Asm()
    gen1.gen_k1(A, cfg, "att_kernel")
    kw = {k: getattr(cfg, k) for k in ("nslot", "now", "noo", "nomfma", "nobar", "stamps", "rep", "nostore", "xpat") if hasattr(cfg, k)}
    A2 = Asm(); gen_k2(A2, "proj_kernel", **kw)
    A3 = Asm(); gen_k3(A3, "red_kernel")
    body = A.text() + A2.text() + A3.text()
    if getattr(cfg, "k2only", False):
        open(sys.argv[1], "w").write(build_file([("proj_kernel", (256, 1, 1), (256, 1, 1), 131072)], A2.text(), [kernel_desc("proj_kernel", 192)]))
        sys.exit(0)
    L = [("att_kernel", (512, 1, 1), (256, 1, 1), 81920), ("proj_kernel", (256, 1, 1), (256, 1, 1), 131072), ("red_kernel", (1024, 1, 1), (256, 1, 1), 0)]
    open(sys.argv[1], "w").write(build_file(L, body, [kernel_desc("att_kernel", 208), kernel_desc("proj_kernel", 192), kernel_desc("red_kernel", 32)]))
```

```python
import sys, math, struct
from asmlib import *

def f2u(x): return struct.unpack("<I", struct.pack("<f", x))[0]
CSCALE = (128 ** -0.5) * math.log2(math.e)

class Cfg:
    nt_kv = True
    T = 8.0
    stamps = False
    warm = True
    warm2 = False
    wx = 0
    hshift = 0
    rot = 'h'
    px = ' nt'
    pw = ' nt'
    etile = [0, 1, 2, 3]
    warmB = 4
    D = 4
    g2prio = 0
    g1prio = 0

SLOT = 16384
KVSEQ = [0, 1, 2, 3, 6, 4, 5]
def kvslot(n): return KVSEQ[n % 7]

vKrdL, vKrdH = 2, 10
vVrdL, vVrdH = 18, 22
vKdma, vVdma = 26, 30
vL = 31
vNM = 32
vO = 48
vQ = 112
vS = 144
vP = 176
vF = 192
vMx = 224; vL2 = 225; vT = 226
vXdma = 2; vWdma = 6; vXrd = 10; vWrd = 14
vA = 48; vXf = 112; vQf = 128
NVGPR = 240
sWave = 28; sW4096 = 29; sTmp = 30; sTmp2 = 31; sThr = 32; sC = 33; sB = 34; sH = 35
SBASE = 62
sRot = 100

class Gen:
    def __init__(self, cfg):
        self.cfg = cfg
        self.A = Asm()
        self.cold = []
        self.nst = 0
        self.nbar = 0

    def stamp(self):
        if not self.cfg.stamps: return
        A = self.A
        A("s_memrealtime s[60:61]")
        A("s_waitcnt lgkmcnt(0)")
        A(f"s_mov_b32 s{SBASE+self.nst}, s60")
        self.nst += 1

    def barrier(self):
        self.A("s_barrier")
        self.nbar += 1
        self.stamp()

    def dump_stamps(self, grp):
        if not self.cfg.stamps: return
        A = self.A
        A("v_mov_b32 v1, 0")
        for i in range(self.nst):
            A(f"v_writelane_b32 v1, s{SBASE+i}, {i}")
        A(f"""
        s_lshl_b32 s54, s2, 3
        s_add_u32 s54, s54, s{sWave}
        s_add_u32 s54, s54, {4*grp}
        s_lshl_b32 s54, s54, 8
        s_add_u32 s54, s54, {64<<20}
        s_add_u32 s56, s52, s54
        s_addc_u32 s57, s53, 0
        s_mov_b32 s58, 256
        s_mov_b32 s59, 0x00020000
        v_lshlrev_b32 v2, 2, v0
        buffer_store_dword v1, v2, s[56:59], 0 offen
        s_waitcnt vmcnt(0)
        """)

    def prologue(self, name):
        A = self.A
        kernel_begin(A, name)
        A(f"""
        s_cmp_ge_u32 s2, 256
        s_cbranch_scc1 K_END
        s_load_dwordx8 s[36:43], s[0:1], 0      ; A_x, A_k, A_v, A_wq
        s_load_dwordx8 s[44:51], s[0:1], 40     ; B_x, B_k, B_v, B_wq
        s_load_dwordx2 s[52:53], s[0:1], 96     ; ws
        v_lshrrev_b32 v1, 6, v0
        v_and_b32 v0, 63, v0                    ; lane
        v_readfirstlane_b32 s{sTmp}, v1         ; wave 0..7
        s_and_b32 s54, s2, 7                    ; xcd
        s_lshr_b32 s55, s2, 3                   ; j
        s_lshl_b32 s54, s54, 2
        s_add_u32 s57, s55, {self.cfg.hshift}
        s_and_b32 s57, s57, 3
        s_add_u32 s{sH}, s54, s57               ; h
        s_lshr_b32 s{sB}, s55, 2                ; b
        s_and_b32 s{sWave}, s{sTmp}, 3
        {self.rot_init()}
        s_lshl_b32 s{sW4096}, s{sWave}, 12
        s_cmp_ge_u32 s{sTmp}, 4
        s_cbranch_scc1 G2_START
        """)

    def whead(self):
        A = self.A
        if self.cfg.wx:
            A(f"s_xor_b32 s58, s{sH}, {self.cfg.wx}")
            A(f"s_lshl_b32 s58, s58, 8")
        else:
            A(f"s_lshl_b32 s58, s{sH}, 8")

    def rot_init(self):
        r = self.cfg.rot
        if r == "h": return f"s_lshl_b32 s{sRot}, s{sH}, 14"
        if r == "bh": return f"s_add_u32 s{sRot}, s{sH}, s{sB}\n        s_lshl_b32 s{sRot}, s{sRot}, 14"
        if r == "j": return f"s_lshl_b32 s{sRot}, s55, 14"
        if r == "b": return f"s_lshl_b32 s{sRot}, s{sB}, 14"
        return ""

    def rot_ins(self, idx):
        if not self.cfg.rot: return [(None, f"s_mov_b32 s{sTmp}, {idx * 16384}")]
        return [(None, f"s_add_u32 s{sTmp}, s{sRot}, {idx << 14}"), (None, f"s_and_b32 s{sTmp}, s{sTmp}, {7 << 14}")]

    def srd(self, d, base, off_s, size):
        self.A(f"""
        s_add_u32 s{d}, s{base}, s{off_s}
        s_addc_u32 s{d+1}, s{base+1}, 0
        s_mov_b32 s{d+2}, {size}
        s_mov_b32 s{d+3}, 0x00020000
        """)

    def g1(self):
        A = self.A; cfg = self.cfg
        nt = " nt" if cfg.nt_kv else ""
        sKV = {(0, 0): 4, (0, 1): 8, (1, 0): 12, (1, 1): 16}
        sOB = 20
        t0, t1, t2, t3 = vT, vT + 1, vT + 2, vT + 3
        if cfg.g1prio: A(f"s_setprio {cfg.g1prio}")
        A(f"""
        v_lshrrev_b32 v{t0}, 4, v0              ; g
        v_and_b32 v{t1}, 15, v0                 ; p
        v_xor_b32 v{t2}, v{t1}, v{t0}           ; p ^ g
        v_lshlrev_b32 v{t2}, 4, v{t2}
        v_lshl_add_u32 v{t2}, v{t0}, 8, v{t2}   ; + g*256
        v_add_u32 v{vKdma}, s{sW4096}, v{t2}
        v_lshlrev_b32 v{t2}, 2, v{t0}           ; 4g
        v_xor_b32 v{t2}, v{t1}, v{t2}           ; p ^ 4g
        v_lshlrev_b32 v{t2}, 4, v{t2}           ; *16
        v_lshl_add_u32 v{t3}, v{t0}, 8, v{t2}   ; + g*256
        v_add_u32 v{vVdma}, s{sW4096}, v{t3}
        """)
        for j in range(1, 4):
            A(f"v_xor_b32 v{vKdma+j}, {64*j}, v{vKdma}")
        vXd, vWd = 48, 52
        A(f"""
        v_lshrrev_b32 v{t0}, 4, v0              ; g
        v_and_b32 v{t1}, 15, v0                 ; p
        v_lshlrev_b32 v{t2}, 2, v{t0}           ; 4g
        v_xor_b32 v{t2}, v{t1}, v{t2}           ; p ^ 4g
        v_lshlrev_b32 v{t2}, 4, v{t2}           ; *16
        v_lshl_add_u32 v{t3}, v{t0}, 13, v{t2}  ; g*8192 + swz
        s_lshl_b32 s{sTmp}, s{sWave}, 17        ; 16w*8192
        v_add_u32 v{vWd}, s{sTmp}, v{t3}
        v_lshrrev_b32 v{t2}, 3, v0              ; L>>3
        v_lshlrev_b32 v{t2}, 10, v{t2}
        s_lshl_b32 s{sTmp}, s{sWave}, 15        ; 32w*1024
        v_add_u32 v{t2}, s{sTmp}, v{t2}
        v_and_b32 v{t1}, 7, v0
        v_xor_b32 v{t1}, v{t1}, v{t0}           ; (L&7) ^ (L>>4)
        v_lshl_add_u32 v{vXd}, v{t1}, 4, v{t2}
        v_xor_b32 v{vXd+1}, 64, v{vXd}
        v_add_u32 v{vXd+1}, 7168, v{vXd+1}
        v_add_u32 v{vXd+2}, {2*7168}, v{vXd}
        v_add_u32 v{vXd+3}, {2*7168}, v{vXd+1}
        s_waitcnt lgkmcnt(0)
        s_mul_i32 s58, s{sB}, 114688
        """)
        self.srd(12, 36, 58, 114688)
        self.whead()
        self.srd(16, 42, 58, 511 * 8192 + 256)
        def q1_x(j):
            A(f"s_add_u32 m0, s{sW4096}, {(4 + j % 3) * SLOT}")
            A(f"s_movk_i32 s{sTmp}, {128 * j}")
            for i in range(4):
                A.vm_issue(("x", j), f"buffer_load_dwordx4 v{vXd+i}, s[12:15], s{sTmp} offen offset:{1024*i}{cfg.px} lds")
        def q1_w(j):
            A(f"s_add_u32 m0, s{sW4096}, {(7 + j % 3) * SLOT}")
            for i in range(4):
                A(f"s_mov_b32 s{sTmp}, {j * 524288 + i * 31744}")
                A.vm_issue(("w", j), f"buffer_load_dwordx4 v{vWd}, s[16:19], s{sTmp} offen offset:{1024*i}{cfg.pw} lds")
        for j in range(3):
            q1_x(j); q1_w(j)
        A(f"""
        s_lshl_b32 s58, s{sB}, 5
        s_add_u32 s58, s58, s{sH}
        s_lshl_b32 s59, s58, 17
        """)
        self.srd(4, 38, 59, 131072); self.srd(8, 40, 59, 131072)
        A(f"s_mov_b32 s25, s59")
        A(f"s_add_u32 s58, s58, 256")
        A(f"s_lshl_b32 s58, s58, 15")
        self.srd(sOB, 52, 58, 32768)
        def issue_tile_ins(n):
            job, m = n >> 4, n & 15
            if m == 0: isV, idx = 0, 0
            elif m == 15: isV, idx = 1, 7
            elif m & 1: isV, idx = 0, (m + 1) // 2
            else: isV, idx = 1, m // 2 - 1
            srd = sKV[(job, isV)]
            L = [(None, f"s_add_u32 m0, s{sW4096}, {kvslot(n) * SLOT}"),
                 ] + self.rot_ins(idx)
            for j in range(4):
                va = vKdma + j if not isV else vVdma
                L.append((("t", n), f"buffer_load_dwordx4 v{va}, s[{srd}:{srd+3}], s{sTmp} offen offset:{1024*j}{nt} lds"))
            return L
        def emit(L):
            for tag, s in L:
                if tag is None: A(s)
                else: A.vm_issue(tag, s)
        def issue_tile(n): emit(issue_tile_ins(n))
        A(f"""
        v_and_b32 v{t0}, 31, v0                 ; m
        v_lshrrev_b32 v{t1}, 5, v0              ; hl
        v_and_b32 v{t2}, 15, v0
        v_xor_b32 v{t2}, v{t2}, v{t1}
        v_lshlrev_b32 v{t2}, 4, v{t2}
        v_lshl_add_u32 v{vKrdL}, v{t0}, 8, v{t2}
        """)
        for t in range(1, 8): A(f"v_xor_b32 v{vKrdL+t}, {32*t}, v{vKrdL}")
        for t in range(8): A(f"v_add_u32 v{vKrdH+t}, 65536, v{vKrdL+t}")
        A(f"""
        v_lshrrev_b32 v{t0}, 2, v0
        v_and_b32 v{t0}, 3, v{t0}               ; r
        v_lshrrev_b32 v{t2}, 4, v0
        v_and_b32 v{t2}, 1, v{t2}               ; G&1
        v_lshlrev_b32 v{t2}, 5, v{t2}           ; 32*(G&1)
        v_lshl_add_u32 v{t2}, v{t0}, 8, v{t2}   ; + r*256
        v_lshl_add_u32 v{t2}, v{t0}, 6, v{t2}   ; + 64*r
        v_and_b32 v{t3}, 3, v0                  ; c
        v_lshl_add_u32 v{vVrdL}, v{t3}, 3, v{t2} ; + 8c
        v_lshl_add_u32 v{vVrdL}, v{t1}, 10, v{vVrdL} ; + 4*hl*256
        """)
        for j in range(1, 4): A(f"v_xor_b32 v{vVrdL+j}, {64*j}, v{vVrdL}")
        for j in range(4): A(f"v_add_u32 v{vVrdH+j}, 65536, v{vVrdL+j}")
        A(f"s_mov_b32 s{sThr}, {hex(f2u(cfg.T))}")
        self.stamp()
        for j in range(8):
            A.vm_wait([("x", j), ("w", j)])
            self.barrier()
            if j >= 1 and j + 2 <= 7:
                q1_x(j + 2); q1_w(j + 2)
            if j == 6: issue_tile(4)
            if j == 7: issue_tile(5)
        self.srd(12, 46, 25, 131072); self.srd(16, 48, 25, 131072)
        vHo = vT + 4
        A(f"v_lshlrev_b32 v{vHo}, 4, v0")
        A(f"v_add_u32 v{vHo}, s{sW4096}, v{vHo}")
        A(f"v_add_u32 v{vHo}, {7*SLOT}, v{vHo}")

        def krd(n, t):
            sl = kvslot(n)
            return (vKrdL + t, sl * SLOT) if sl < 4 else (vKrdH + t, sl * SLOT - 65536)
        def vrd(n, j):
            sl = kvslot(n)
            return (vVrdL + j, sl * SLOT) if sl < 4 else (vVrdH + j, sl * SLOT - 65536)
        def ktile(job, p): return 16 * job + (0 if p == 0 else 2 * p - 1)
        def vtile(job, p): return 16 * job + (15 if p == 7 else 2 * p + 2)

        fcnt = [0]
        def mf_S(job, k):
            n = ktile(job, k >> 1); L = []
            for t in range(8):
                reg, off = krd(n, t)
                L.append(dict(kind="K", reads=[(reg, off + (k & 1) * 8192)], t=t, k=k))
            return L
        def mf_PV(job, k):
            n = vtile(job, k >> 1); L = []
            for u in range(2):
                for j in range(4):
                    reg, off = vrd(n, j)
                    rows = 32 * (k & 1) + 16 * u
                    L.append(dict(kind="V", reads=[(reg, off + rows * 256), (reg, off + (rows + 8) * 256)], u=u, j=j, k=k))
            return L
        def issue_reads(m):
            fi = fcnt[0] % 8; fcnt[0] += 1
            m["fi"] = fi; m["tag"] = ("f", fcnt[0])
            b = vF + 4 * fi
            if m["kind"] == "K":
                reg, off = m["reads"][0]
                A.lg_issue(m["tag"], f"ds_read_b128 v[{b}:{b+3}], v{reg} offset:{off}")
            else:
                for sh, (reg, off) in enumerate(m["reads"]):
                    A.lg_issue(m["tag"], f"ds_read_b64_tr_b16 v[{b+2*sh}:{b+2*sh+1}], v{reg} offset:{off}")
        def issue_mfma(m):
            A.lg_wait(m["tag"])
            b = vF + 4 * m["fi"]
            if m["kind"] == "K":
                k, t = m["k"], m["t"]
                d = vS + 16 * (k & 1)
                c = f"v[{d}:{d+15}]" if t else ("0" if k == 0 else f"v[{vNM}:{vNM+15}]")
                A(f"v_mfma_f32_32x32x16_bf16 v[{d}:{d+15}], v[{b}:{b+3}], v[{vQ+4*t}:{vQ+4*t+3}], {c}")
            else:
                k, u, j = m["k"], m["u"], m["j"]
                d = vO + 16 * j; p = vP + 8 * (k & 1) + 4 * u
                c = "0" if (k == 0 and u == 0) else f"v[{d}:{d+15}]"
                A(f"v_mfma_f32_32x32x16_bf16 v[{d}:{d+15}], v[{b}:{b+3}], v[{p}:{p+3}], {c}")
        def va_soft(k):
            s = vS + 16 * (k & 1); p = vP + 8 * (k & 1); L = []
            for r in range(0, 16, 2):
                L.append(f"v_exp_f32 v{s+r}, v{s+r}")
                L.append(f"v_exp_f32 v{s+r+1}, v{s+r+1}")
                if r >= 2:
                    L.append(f"v_add_f32 v{vL}, v{vL}, v{s+r-2}")
                    L.append(f"v_add_f32 v{vL2}, v{vL2}, v{s+r-1}")
                    L.append(f"v_cvt_pk_bf16_f32 v{p+(r-2)//2}, v{s+r-2}, v{s+r-1}")
            L.append(f"v_add_f32 v{vL}, v{vL}, v{s+14}")
            L.append(f"v_add_f32 v{vL2}, v{vL2}, v{s+15}")
            L.append(f"v_cvt_pk_bf16_f32 v{p+7}, v{s+14}, v{s+15}")
            return L
        def va_max(k):
            s = vS + 16 * (k & 1); L = [f"v_max3_f32 v{vMx}, v{s}, v{s+1}, v{s+2}", f"v_max3_f32 v{vT}, v{s+3}, v{s+4}, v{s+5}"]
            L.append(f"v_max3_f32 v{vMx}, v{vMx}, v{s+6}, v{s+7}")
            L.append(f"v_max3_f32 v{vT}, v{vT}, v{s+8}, v{s+9}")
            L.append(f"v_max3_f32 v{vMx}, v{vMx}, v{s+10}, v{s+11}")
            L.append(f"v_max3_f32 v{vT}, v{vT}, v{s+12}, v{s+13}")
            L.append(f"v_max3_f32 v{vMx}, v{vMx}, v{s+14}, v{s+15}")
            L.append(f"v_max_f32 v{vMx}, v{vMx}, v{vT}")
            if k > 0: L.append(f"v_cmp_lt_f32 vcc, s{sThr}, v{vMx}")
            return L
        def slow(job, k):
            lab = f"SLOW_{job}_{k}"; back = f"BACK_{job}_{k}"
            A(f"s_cbranch_vccnz {lab}")
            A(f"{back}:")
            C = Asm()
            s = vS + 16 * (k & 1); p = vP + 8 * ((k - 1) & 1)
            a, d, al = vT, vT + 1, vT + 2
            C(f"{lab}:")
            C("s_nop 15")
            C(f"""
            v_mov_b32 v{a}, v{vMx}
            v_permlane32_swap_b32 v{vMx}, v{a}
            v_max_f32 v{a}, v{a}, v{vMx}
            v_cmp_lt_f32 vcc, s{sThr}, v{a}
            v_cndmask_b32 v{d}, 0, v{a}, vcc
            v_exp_f32 v{al}, -v{d}
            """)
            for r in range(16): C(f"v_sub_f32 v{s+r}, v{s+r}, v{d}")
            for r in range(16): C(f"v_sub_f32 v{vNM+r}, v{vNM+r}, v{d}")
            C(f"v_mul_f32 v{vL}, v{vL}, v{al}")
            C(f"v_mul_f32 v{vL2}, v{vL2}, v{al}")
            for r in range(64): C(f"v_mul_f32 v{vO+r}, v{vO+r}, v{al}")
            for r in range(8):
                C(f"v_lshlrev_b32 v{a}, 16, v{p+r}")
                C(f"v_and_b32 v{d}, 0xffff0000, v{p+r}")
                C(f"v_mul_f32 v{a}, v{a}, v{al}")
                C(f"v_mul_f32 v{d}, v{d}, v{al}")
                C(f"v_cvt_pk_bf16_f32 v{p+r}, v{a}, v{d}")
            C("s_nop 3")
            C(f"s_branch {back}")
            self.cold.append(C.text())
        def first_max():
            s = vS; a = vT
            A(f"""
            v_mov_b32 v{a}, v{vMx}
            v_permlane32_swap_b32 v{vMx}, v{a}
            v_max_f32 v{a}, v{a}, v{vMx}
            v_mov_b32 v{vL}, 0
            v_mov_b32 v{vL2}, 0
            """)
            for r in range(16): A(f"v_sub_f32 v{s+r}, v{s+r}, v{a}")
            for r in range(16): A(f"v_sub_f32 v{vNM+r}, 0, v{a}")

        def run_step(mfs, valu_at, extras):
            D = cfg.D
            for m in mfs[:D]: issue_reads(m)
            def fill(g):
                for x in valu_at.get(g, []):
                    if callable(x): x()
                    else: A(x)
                for tag, s in extras.get(g, []):
                    if tag is None: A(s)
                    else: A.vm_issue(tag, s)
            fill(-1)
            for i, m in enumerate(mfs):
                issue_mfma(m)
                if i + D < len(mfs): issue_reads(mfs[i + D])
                fill(i)
        def spread(valu_at, L, g0, g1):
            n = g1 - g0 + 1
            for i, x in enumerate(L):
                g = g0 + (i * n) // len(L)
                valu_at.setdefault(g, []).append(x)

        def tiles_after(job, s):
            if job == 0:
                if s == 0: return [6]
                if s == 1: return [7]
                return [2 * (s - 1) + 6, 2 * (s - 1) + 7]
            else:
                if s == 0: return [22]
                if s == 1: return [23]
                L = [16 + 2 * (s - 1) + 6, 16 + 2 * (s - 1) + 7]
                return [n for n in L if n < 32]
        def need(job, s):
            if s == 0: return [16 * job]
            if s == 8: return [16 * job + 15]
            return [16 * job + 2 * s - 1, 16 * job + 2 * s]

        for job in range(2):
            for s in range(9):
                A.comment(f"==== job {job} step {s}")
                A.vm_wait([("t", n) for n in need(job, s)])
                self.barrier()
                extras = {}
                tl = tiles_after(job, s)
                if s == 0:
                    hi = 2 * SLOT if job == 0 else SLOT
                    for t in range(8):
                        off = (0 if t < 4 else hi) + (t & 3) * 1024
                        A.lg_issue(("q", t), f"ds_read_b128 v[{vQ+4*t}:{vQ+4*t+3}], v{vHo} offset:{off}")
                    for n in tl: emit(issue_tile_ins(n))
                    tl = []
                    A.lg_wait([("q", t) for t in range(8)])
                    if job == 1:
                        for t in range(8):
                            off = (0 if t < 4 else hi) + (t & 3) * 1024
                            A(f"ds_write_b128 v{vHo}, v[{vS+4*t}:{vS+4*t+3}] offset:{off}")
                        A("s_waitcnt lgkmcnt(0)")
                    self.barrier()
                    mfs = mf_S(job, 0) + mf_S(job, 1)
                    va = {}
                    D = cfg.D
                    for m in mfs[:D]: issue_reads(m)
                    for i in range(8):
                        issue_mfma(mfs[i])
                        if i + D < 16: issue_reads(mfs[i + D])
                    for x in va_max(0): A(x)
                    first_max()
                    sm = va_soft(0)
                    spread(va, sm, 8, 13)
                    for i in range(8, 16):
                        issue_mfma(mfs[i])
                        if i + D < 16: issue_reads(mfs[i + D])
                        for x in va.get(i, []): A(x)
                    for x in va_max(1): A(x)
                elif s <= 7:
                    k1, k2 = 2 * s - 1, 2 * s
                    mfs = mf_S(job, k1 + 1) + mf_PV(job, k1 - 1) + mf_S(job, k2 + 1) + mf_PV(job, k2 - 1)
                    va = {}
                    va[-1] = [lambda job=job, k1=k1: slow(job, k1)]
                    sm1 = va_soft(k1)
                    va[-1] += sm1[:8]
                    spread(va, sm1[8:], 0, 11)
                    spread(va, va_max(k2), 12, 15)
                    va.setdefault(15, []).append(lambda job=job, k2=k2: slow(job, k2))
                    spread(va, va_soft(k2), 16, 27)
                    spread(va, va_max(k2 + 1), 28, 31)
                    g = 1
                    for n in tl:
                        L = issue_tile_ins(n)
                        extras.setdefault(g, []).extend(L[:3]); g += 2
                        for x in L[3:]:
                            extras.setdefault(g, []).append(x); g += 2
                        g += 8
                    run_step(mfs, va, extras)
                else:
                    mfs = mf_PV(job, 14) + mf_PV(job, 15)
                    va = {}
                    va[-1] = [lambda job=job: slow(job, 15)]
                    sm = va_soft(15)
                    va[-1] += sm[:8]
                    spread(va, sm[8:], 0, 6)
                    g = 1
                    for n in tl:
                        L = issue_tile_ins(n)
                        extras.setdefault(g, []).extend(L[:3]); g += 1
                        for x in L[3:]:
                            extras.setdefault(g, []).append(x); g += 1
                        g += 2
                    run_step(mfs, va, extras)
                    a, b2 = vT, vT + 1
                    A(f"v_add_f32 v{a}, v{vL}, v{vL2}")
                    A(f"v_mov_b32 v{b2}, v{a}")
                    A(f"v_permlane32_swap_b32 v{a}, v{b2}")
                    A(f"v_add_f32 v{a}, v{a}, v{b2}")
                    A(f"v_rcp_f32 v{a}, v{a}")
                    if job == 1:
                        A(f"v_lshlrev_b32 v{b2}, 4, v0")
                        A(f"s_lshl_b32 s{sTmp}, s{sWave}, 13")
                        A(f"v_add_u32 v{b2}, s{sTmp}, v{b2}")
                        A(f"v_add_u32 v{vT+2}, 4096, v{b2}")
                    for j in range(4):
                        for r in range(16):
                            A(f"v_mul_f32 v{vO+16*j+r}, v{vO+16*j+r}, v{a}")
                        for u in range(2):
                            t = 2 * j + u
                            for r in range(4):
                                A(f"v_cvt_pk_bf16_f32 v{vS+4*t+r}, v{vO+16*j+8*u+2*r}, v{vO+16*j+8*u+2*r+1}")
                            if job == 1:
                                ad = b2 if t < 4 else vT + 2
                                A(f"buffer_store_dwordx4 v[{vS+4*t}:{vS+4*t+3}], v{ad}, s[{sOB}:{sOB+3}], 0 offen offset:{1024*(t&3)}")
        self.stamp()
        A("s_waitcnt vmcnt(0)")
        self.stamp()
        self.dump_stamps(0)
        A("s_endpgm")

    def g2(self):
        A = self.A; cfg = self.cfg
        A.ev = {}; A.vm = []; A.lg = []
        A("G2_START:")
        if cfg.g2prio: A(f"s_setprio {cfg.g2prio}")
        sX = [4, 12]; sW = [8, 16]; sOA = 20
        t0, t1, t2, t3 = vT, vT + 1, vT + 2, vT + 3
        A(f"""
        v_lshrrev_b32 v{t0}, 4, v0              ; g
        v_and_b32 v{t1}, 15, v0                 ; p
        v_lshlrev_b32 v{t2}, 2, v{t0}           ; 4g
        v_xor_b32 v{t2}, v{t1}, v{t2}           ; p ^ 4g
        v_lshlrev_b32 v{t2}, 4, v{t2}           ; *16
        v_lshl_add_u32 v{t3}, v{t0}, 13, v{t2}  ; g*8192 + swz
        s_lshl_b32 s{sTmp}, s{sWave}, 17        ; 16w*8192
        v_add_u32 v{vWdma}, s{sTmp}, v{t3}
        v_lshrrev_b32 v{t2}, 3, v0              ; L>>3
        v_lshlrev_b32 v{t2}, 10, v{t2}
        s_lshl_b32 s{sTmp}, s{sWave}, 15        ; 32w*1024
        v_add_u32 v{t2}, s{sTmp}, v{t2}
        v_and_b32 v{t1}, 7, v0
        v_xor_b32 v{t1}, v{t1}, v{t0}           ; (L&7) ^ (L>>4)
        v_lshl_add_u32 v{vXdma}, v{t1}, 4, v{t2}
        v_xor_b32 v{vXdma+1}, 64, v{vXdma}
        v_add_u32 v{vXdma+1}, 7168, v{vXdma+1}
        v_add_u32 v{vXdma+2}, {2*7168}, v{vXdma}
        v_add_u32 v{vXdma+3}, {2*7168}, v{vXdma+1}
        s_waitcnt lgkmcnt(0)
        s_mul_i32 s58, s{sB}, 114688
        """)
        self.srd(sX[0], 36, 58, 114688); self.srd(sX[1], 44, 58, 114688)
        self.whead()
        self.srd(sW[0], 42, 58, 511 * 8192 + 256); self.srd(sW[1], 50, 58, 511 * 8192 + 256)
        A(f"""
        s_lshl_b32 s58, s{sB}, 5
        s_add_u32 s58, s58, s{sH}
        s_lshl_b32 s58, s58, 15
        """)
        self.srd(sOA, 52, 58, 32768)
        def issue_x(job, j, slot):
            A(f"s_add_u32 m0, s{sW4096}, {slot * SLOT}")
            A(f"s_movk_i32 s{sTmp}, {128 * j}")
            for i in range(4):
                A.vm_issue(("x", job, j), f"buffer_load_dwordx4 v{vXdma+i}, s[{sX[job]}:{sX[job]+3}], s{sTmp} offen offset:{1024*i}{cfg.px} lds")
        def issue_w(job, j, slot):
            A(f"s_add_u32 m0, s{sW4096}, {slot * SLOT}")
            for i in range(4):
                A(f"s_mov_b32 s{sTmp}, {j * 524288 + i * 31744}")
                A.vm_issue(("w", job, j), f"buffer_load_dwordx4 v{vWdma}, s[{sW[job]}:{sW[job]+3}], s{sTmp} offen offset:{1024*i}{cfg.pw} lds")
        xslot0 = lambda j: 4 + j % 3
        wslot0 = lambda j: 7 + j % 3
        wslot1 = lambda j: 8 + (j & 1)
        vKd, vVd, vWa = 18, 22, 24
        A(f"""
        v_lshrrev_b32 v{t0}, 4, v0              ; g
        v_and_b32 v{t1}, 15, v0                 ; p
        v_xor_b32 v{t2}, v{t1}, v{t0}           ; p ^ g
        v_lshlrev_b32 v{t2}, 4, v{t2}
        v_lshl_add_u32 v{t2}, v{t0}, 8, v{t2}   ; + g*256
        v_add_u32 v{vKd}, s{sW4096}, v{t2}
        v_lshlrev_b32 v{t2}, 2, v{t0}           ; 4g
        v_xor_b32 v{t2}, v{t1}, v{t2}           ; p ^ 4g
        v_lshlrev_b32 v{t2}, 4, v{t2}           ; *16
        v_lshl_add_u32 v{t3}, v{t0}, 8, v{t2}   ; + g*256
        v_add_u32 v{vVd}, s{sW4096}, v{t3}
        """)
        for j in range(1, 4):
            A(f"v_xor_b32 v{vKd+j}, {64*j}, v{vKd}")
        A(f"""
        v_lshrrev_b32 v{vWa}, 2, v0
        v_lshlrev_b32 v{vWa}, 13, v{vWa}
        v_and_b32 v{t1}, 3, v0
        v_lshl_add_u32 v{vWa}, v{t1}, 6, v{vWa}   ; (L>>2)*8192 + (L&3)*64
        v_lshrrev_b32 v{vWa+1}, 3, v0
        v_lshlrev_b32 v{vWa+1}, 10, v{vWa+1}
        v_and_b32 v{t2}, 7, v0
        v_lshl_add_u32 v{vWa+1}, v{t2}, 7, v{vWa+1}   ; (L>>3)*1024 + (L&7)*128
        v_add_u32 v{vWa+2}, 64, v{vWa+1}
        s_lshl_b32 s58, s{sB}, 6                ; 64 b
        s_lshl_b32 s59, s{sWave}, 4             ; 16 w
        s_add_u32 s58, s58, s59
        s_lshl_b32 s98, s58, 13
        s_and_b32 s59, s{sH}, 3
        s_mul_i32 s59, s59, {28*1024}
        s_lshl_b32 s99, s{sWave}, 13
        s_add_u32 s99, s99, s59
        s_lshl_b32 s58, s{sB}, 5
        s_add_u32 s58, s58, s{sH}
        s_lshl_b32 s59, s58, 17
        """)
        self.srd(24, 38, 59, 131072); self.srd(56, 40, 59, 131072)
        def warm(job, dst):
            A.vm_issue("pf", f"buffer_load_dword v{dst}, v{vWa}, s[{sW[job]}:{sW[job]+3}], s98 offen{cfg.pw}")
            A.vm_issue("pf", f"buffer_load_dword v{dst+1}, v{vWa+1}, s[{sX[job]}:{sX[job]+3}], s99 offen{cfg.px}")
            if cfg.warm2: A.vm_issue("pf", f"buffer_load_dword v{dst+2}, v{vWa+2}, s[{sX[job]}:{sX[job]+3}], s99 offen{cfg.px}")
        def early_tile(n):
            nt = " nt" if cfg.nt_kv else ""
            isV = (n == 2); idx = [0, 1, 0, 2][n]
            srd = 56 if isV else 24
            A(f"s_add_u32 m0, s{sW4096}, {kvslot(n) * SLOT}")
            for _, x in self.rot_ins(idx): A(x)
            for j in range(4):
                va = vKd + j if not isV else vVd
                A.vm_issue(("t", n), f"buffer_load_dwordx4 v{va}, s[{srd}:{srd+3}], s{sTmp} offen offset:{1024*j}{nt} lds")
        if cfg.warm: warm(0, 232)
        etile = cfg.etile
        for n in range(4):
            if etile[n] < 0: early_tile(n)
        if cfg.warm and cfg.warmB < 0: warm(1, 236)
        A(f"""
        v_and_b32 v{t0}, 31, v0                 ; q
        v_lshrrev_b32 v{t1}, 5, v0              ; hl
        v_lshrrev_b32 v{t2}, 1, v{t0}
        v_and_b32 v{t2}, 7, v{t2}
        v_xor_b32 v{t2}, v{t2}, v{t1}
        v_lshlrev_b32 v{t2}, 4, v{t2}
        v_lshl_add_u32 v{t2}, v{t0}, 7, v{t2}
        v_add_u32 v{vXrd}, s{sW4096}, v{t2}
        v_add_u32 v{vXrd}, 65536, v{vXrd}
        """)
        for u in range(1, 4): A(f"v_xor_b32 v{vXrd+u}, {32*u}, v{vXrd}")
        A(f"""
        v_lshrrev_b32 v{t0}, 2, v0
        v_and_b32 v{t0}, 3, v{t0}               ; r
        v_lshrrev_b32 v{t2}, 4, v0
        v_and_b32 v{t2}, 1, v{t2}               ; G&1
        v_lshlrev_b32 v{t2}, 5, v{t2}           ; 32*(G&1)
        v_lshl_add_u32 v{t2}, v{t0}, 8, v{t2}   ; + r*256
        v_lshl_add_u32 v{t2}, v{t0}, 6, v{t2}   ; + 64*r
        v_and_b32 v{t3}, 1, v0
        v_lshl_add_u32 v{vWrd}, v{t3}, 4, v{t2} ; + 16*(c&1)
        v_lshrrev_b32 v{t3}, 1, v0
        v_and_b32 v{t3}, 1, v{t3}
        v_lshl_add_u32 v{vWrd}, v{t3}, 3, v{vWrd} ; + 8*(c>>1)
        v_lshl_add_u32 v{vWrd}, v{t1}, 11, v{vWrd} ; + 8*hl*256
        v_add_u32 v{vWrd}, {7*SLOT}, v{vWrd}
        """)
        for j in range(1, 4): A(f"v_xor_b32 v{vWrd+j}, {64*j}, v{vWrd}")
        vHo = vT + 4
        A(f"v_lshlrev_b32 v{vHo}, 4, v0")
        A(f"v_add_u32 v{vHo}, s{sW4096}, v{vHo}")
        A(f"v_add_u32 v{vHo}, {7*SLOT}, v{vHo}")
        A(f"s_mov_b32 s{sC}, {hex(f2u(CSCALE))}")
        self.stamp()

        def chunk(job, j, xs, ws, after_x):
            for u in range(4):
                A.lg_issue(("xf", u), f"ds_read_b128 v[{vXf+4*u}:{vXf+4*u+3}], v{vXrd+u} offset:{xs*SLOT-65536}")
            frs = [(u, jj) for u in range(4) for jj in range(4)]
            def rd(i):
                u, jj = frs[i]; fi = i % 8
                for sh in range(2):
                    off = (ws - 7) * SLOT + (16 * u + 4 * sh) * 256
                    A.lg_issue(("wf", i), f"ds_read_b64_tr_b16 v[{vF+4*fi+2*sh}:{vF+4*fi+2*sh+1}], v{vWrd+jj} offset:{off}")
            for i in range(5): rd(i)
            A.lg_wait([("xf", u) for u in range(4)])
            after_x()
            for i in range(16):
                u, jj = frs[i]; fi = i % 8
                if i + 5 < 16: rd(i + 5)
                A.lg_wait(("wf", i))
                c = "0" if (j == 0 and u == 0) else f"v[{vA+16*jj}:{vA+16*jj+15}]"
                A(f"v_mfma_f32_32x32x16_bf16 v[{vA+16*jj}:{vA+16*jj+15}], v[{vF+4*fi}:{vF+4*fi+3}], v[{vXf+4*u}:{vXf+4*u+3}], {c}")
        def convert_q(hi):
            for jj in range(4):
                for r in range(16):
                    A(f"v_mul_f32 v{vA+16*jj+r}, s{sC}, v{vA+16*jj+r}")
                for r in range(0, 16, 2):
                    A(f"v_cvt_pk_bf16_f32 v{vQf + 8*jj + r//2}, v{vA+16*jj+r}, v{vA+16*jj+r+1}")
                for u in range(2):
                    t = 2 * jj + u
                    off = (0 if t < 4 else hi) + (t & 3) * 1024
                    A(f"ds_write_b128 v{vHo}, v[{vQf+4*t}:{vQf+4*t+3}] offset:{off}")
            A("s_waitcnt lgkmcnt(0)")
        for j in range(8):
            self.barrier()
            def aft(j=j):
                for n in range(4):
                    if etile[n] == j: early_tile(n)
                if cfg.warm and cfg.warmB == j: warm(1, 236)
            chunk(0, j, xslot0(j), wslot0(j), aft)
        A.vm_wait([("t", 0)])
        convert_q(2 * SLOT)
        self.barrier()
        issue_w(1, 0, wslot1(0))
        self.barrier()
        issue_x(1, 0, 7); issue_w(1, 1, wslot1(1))
        A.vm_wait([("w", 1, 0)])
        for s in range(1, 9):
            j = s - 1
            self.barrier()
            if j >= 1 and j + 1 <= 7: issue_w(1, j + 1, wslot1(j + 1))
            A.vm_wait([("x", 1, j)])
            chunk(1, j, 7, wslot1(j), (lambda j=j: issue_x(1, j + 1, 7) if j + 1 <= 7 else None))
            if j + 1 <= 7: A.vm_wait([("w", 1, j + 1)])
        convert_q(SLOT)
        self.barrier()
        self.barrier()
        for t in range(8):
            off = (0 if t < 4 else SLOT) + (t & 3) * 1024
            A.lg_issue(("o", t), f"ds_read_b128 v[{vQf+4*t}:{vQf+4*t+3}], v{vHo} offset:{off}")
        A(f"v_lshlrev_b32 v{t0}, 4, v0")
        A(f"s_lshl_b32 s{sTmp}, s{sWave}, 13")
        A(f"v_add_u32 v{t0}, s{sTmp}, v{t0}")
        A(f"v_add_u32 v{t1}, 4096, v{t0}")
        for t in range(8):
            A.lg_wait(("o", t))
            ad = t0 if t < 4 else t1
            A(f"buffer_store_dwordx4 v[{vQf+4*t}:{vQf+4*t+3}], v{ad}, s[{sOA}:{sOA+3}], 0 offen offset:{1024*(t&3)}")
        for s in range(1, 9):
            self.barrier()
        self.stamp()
        A("s_waitcnt vmcnt(0)")
        self.stamp()
        self.dump_stamps(1)
        A("s_endpgm")

    def build(self, name):
        self.prologue(name)
        self.g1(); n1 = self.nbar; s1 = self.nst
        self.nbar = 0; self.nst = 0
        self.g2()
        assert n1 == self.nbar, (n1, self.nbar)
        A = self.A
        A("K_END:")
        A("s_endpgm")
        for c in self.cold: A.raw(c)
        return A.text()

if __name__ == "__main__":
    cfg = Cfg()
    for a in sys.argv[2:]:
        k, v = a.split("="); setattr(cfg, k, eval(v))
    G = Gen(cfg)
    body = G.build("att_kernel")
    L = [("att_kernel", (256, 1, 1), (512, 1, 1), 163840)]
    descs = [kernel_desc("att_kernel", NVGPR)]
    if getattr(cfg, "full", False):
        import gen2
        A2 = Asm(); gen2.gen_k2(A2, "proj_kernel")
        A3 = Asm(); gen2.gen_k3(A3, "red_kernel")
        body += A2.text() + A3.text()
        L += [("proj_kernel", (256, 1, 1), (256, 1, 1), 131072), ("red_kernel", (1024, 1, 1), (256, 1, 1), 0)]
        descs += [kernel_desc("proj_kernel", 192), kernel_desc("red_kernel", 32)]
    open(sys.argv[1], "w").write(build_file(L, body, descs))
    print("nops inserted:", G.A.nops, "lines:", len(G.A.l), "barriers", G.nbar, "stamps", G.nst)
```

```python
import sys, math, struct
from asmlib import *

def f2u(x): return struct.unpack("<I", struct.pack("<f", x))[0]
CSCALE = (128 ** -0.5) * math.log2(math.e)

class Cfg:
    nt_kv = True
    T = 8.0
    stamps = False
    warm = True
    warm2 = False
    wx = 0
    hshift = 0
    rot = 'h'
    px = ' nt'
    pw = ' nt'
    etile = [0, 1, 2, 3]
    warmB = 4
    D = 4
    g2prio = 0
    g1prio = 0
    fuse = True
    xb = [1, 2, 3, 4, 5, 6, 7, 8]
    spin = 20000
    sched = {1: [0], 2: [1], 4: [2], 5: [3], 6: [4], 7: [5], 8: [6], 9: [7]}
    pwo = ''

SLOT = 16384
KVSEQ = [0, 1, 2, 3, 6, 4, 5]
def kvslot(n): return KVSEQ[n % 7]

vKrdL, vKrdH = 2, 10
vVrdL, vVrdH = 18, 22
vKdma, vVdma = 26, 30
vL = 31
vNM = 32
vO = 48
vQ = 112
vS = 144
vP = 176
vF = 192
vMx = 224; vL2 = 225; vT = 226
vWoD = 236
gWdma = 2; gXad = 3; gWrdA = 4; gWrdB = 8; gWo0 = 8; gWo4 = 12; gWo6 = 16; gWoDma = 20; gOad = 21; gHo = 22
gT = 23
gP = 28
gA = 32; gX = 96; gF = 224
NVGPR = 256
WS1 = [2, 3, 6, 4, 5, 7, 8, 9]
FLAG_OFF = 96 << 20
PART_OFF = 32 << 20
sWave = 28; sW4096 = 29; sTmp = 30; sTmp2 = 31; sThr = 32; sC = 33; sB = 34; sH = 35
SBASE = 62
sRot = 100

class Gen:
    def __init__(self, cfg):
        self.cfg = cfg
        self.A = Asm()
        self.cold = []
        self.nst = 0
        self.nbar = 0

    def stamp(self):
        if not self.cfg.stamps: return
        A = self.A
        A("s_memrealtime s[60:61]")
        A("s_waitcnt lgkmcnt(0)")
        A(f"s_mov_b32 s{SBASE+self.nst}, s60")
        self.nst += 1

    def barrier(self):
        self.A("s_barrier")
        self.nbar += 1
        self.stamp()

    def dump_stamps(self, grp):
        if not self.cfg.stamps: return
        A = self.A
        A("v_mov_b32 v1, 0")
        for i in range(self.nst):
            A(f"v_writelane_b32 v1, s{SBASE+i}, {i}")
        A(f"""
        s_lshl_b32 s54, s2, 3
        s_add_u32 s54, s54, s{sWave}
        s_add_u32 s54, s54, {4*grp}
        s_lshl_b32 s54, s54, 8
        s_add_u32 s54, s54, {64<<20}
        s_add_u32 s56, s52, s54
        s_addc_u32 s57, s53, 0
        s_mov_b32 s58, 256
        s_mov_b32 s59, 0x00020000
        v_lshlrev_b32 v2, 2, v0
        buffer_store_dword v1, v2, s[56:59], 0 offen
        s_waitcnt vmcnt(0)
        """)

    def prologue(self, name):
        A = self.A
        kernel_begin(A, name)
        A(f"""
        s_cmp_ge_u32 s2, 256
        s_cbranch_scc1 K_END
        s_load_dwordx8 s[36:43], s[0:1], 0      ; A_x, A_k, A_v, A_wq
        s_load_dwordx8 s[44:51], s[0:1], 40     ; B_x, B_k, B_v, B_wq
        s_load_dwordx2 s[52:53], s[0:1], 96     ; ws
        v_lshrrev_b32 v1, 6, v0
        v_and_b32 v0, 63, v0                    ; lane
        v_readfirstlane_b32 s{sTmp}, v1         ; wave 0..7
        s_and_b32 s54, s2, 7                    ; xcd
        s_lshr_b32 s55, s2, 3                   ; j
        s_lshl_b32 s54, s54, 2
        s_add_u32 s57, s55, {self.cfg.hshift}
        s_and_b32 s57, s57, 3
        s_add_u32 s{sH}, s54, s57               ; h
        s_lshr_b32 s{sB}, s55, 2                ; b
        s_and_b32 s{sWave}, s{sTmp}, 3
        {self.rot_init()}
        s_lshl_b32 s{sW4096}, s{sWave}, 12
        s_cmp_ge_u32 s{sTmp}, 4
        s_cbranch_scc1 G2_START
        """)

    def whead(self):
        A = self.A
        if self.cfg.wx:
            A(f"s_xor_b32 s58, s{sH}, {self.cfg.wx}")
            A(f"s_lshl_b32 s58, s58, 8")
        else:
            A(f"s_lshl_b32 s58, s{sH}, 8")

    def rot_init(self):
        r = self.cfg.rot
        if r == "h": return f"s_lshl_b32 s{sRot}, s{sH}, 14"
        if r == "bh": return f"s_add_u32 s{sRot}, s{sH}, s{sB}\n        s_lshl_b32 s{sRot}, s{sRot}, 14"
        if r == "j": return f"s_lshl_b32 s{sRot}, s55, 14"
        if r == "b": return f"s_lshl_b32 s{sRot}, s{sB}, 14"
        return ""

    def rot_ins(self, idx):
        if not self.cfg.rot: return [(None, f"s_mov_b32 s{sTmp}, {idx * 16384}")]
        return [(None, f"s_add_u32 s{sTmp}, s{sRot}, {idx << 14}"), (None, f"s_and_b32 s{sTmp}, s{sTmp}, {7 << 14}")]

    def hh_ins(self, c):
        return [(None, f"s_add_u32 s{sTmp}, s{sH}, {c >> 1}"), (None, f"s_and_b32 s{sTmp}, s{sTmp}, 3"),
                (None, f"s_lshl_b32 s{sTmp}, s{sTmp}, 17"), (None, f"s_add_u32 s{sTmp}, s{sTmp}, {(c & 1) * 65536}")]

    def wo_srd(self, d, p):
        self.A(f"""
        s_lshr_b32 s58, s{sH}, 2
        s_lshl_b32 s58, s58, 19
        s_and_b32 s59, s{sH}, 3
        s_lshl_b32 s59, s59, 8
        s_add_u32 s58, s58, s59
        """)
        self.srd(d, p, 58, 511 * 1024 + 256)

    def flag_srd(self, d):
        self.A(f"""
        s_lshr_b32 s58, s{sH}, 2
        s_lshl_b32 s59, s{sB}, 3
        s_add_u32 s58, s58, s59
        s_lshl_b32 s58, s58, 7
        s_add_u32 s58, s58, {FLAG_OFF}
        """)
        self.srd(d, 52, 58, 128)

    def flag_set(self, srd, br, va, vd):
        self.A(f"""
        s_and_b32 s{sTmp}, s{sH}, 3
        s_lshl_b32 s{sTmp2}, s{sWave}, 2
        s_add_u32 s{sTmp}, s{sTmp}, s{sTmp2}
        s_lshl_b32 s{sTmp}, s{sTmp}, 2
        v_mov_b32 v{va}, {br * 64}
        v_mov_b32 v{vd}, 1
        s_mov_b64 exec, 1
        buffer_store_dword v{vd}, v{va}, s[{srd}:{srd+3}], s{sTmp} offen sc1
        s_mov_b64 exec, -1
        """)

    def srd(self, d, base, off_s, size):
        self.A(f"""
        s_add_u32 s{d}, s{base}, s{off_s}
        s_addc_u32 s{d+1}, s{base+1}, 0
        s_mov_b32 s{d+2}, {size}
        s_mov_b32 s{d+3}, 0x00020000
        """)

    def g1(self):
        A = self.A; cfg = self.cfg
        nt = " nt" if cfg.nt_kv else ""
        sKV = {(0, 0): 4, (0, 1): 8, (1, 0): 12, (1, 1): 16}
        sOB = 20
        t0, t1, t2, t3 = vT, vT + 1, vT + 2, vT + 3
        if cfg.g1prio: A(f"s_setprio {cfg.g1prio}")
        if cfg.fuse: A("s_load_dwordx2 s[54:55], s[0:1], 72")
        A(f"""
        v_lshrrev_b32 v{t0}, 4, v0              ; g
        v_and_b32 v{t1}, 15, v0                 ; p
        v_xor_b32 v{t2}, v{t1}, v{t0}           ; p ^ g
        v_lshlrev_b32 v{t2}, 4, v{t2}
        v_lshl_add_u32 v{t2}, v{t0}, 8, v{t2}   ; + g*256
        v_add_u32 v{vKdma}, s{sW4096}, v{t2}
        v_lshlrev_b32 v{t2}, 2, v{t0}           ; 4g
        v_xor_b32 v{t2}, v{t1}, v{t2}           ; p ^ 4g
        v_lshlrev_b32 v{t2}, 4, v{t2}           ; *16
        v_lshl_add_u32 v{t3}, v{t0}, 8, v{t2}   ; + g*256
        v_add_u32 v{vVdma}, s{sW4096}, v{t3}
        """)
        for j in range(1, 4):
            A(f"v_xor_b32 v{vKdma+j}, {64*j}, v{vKdma}")
        vWd = 52
        A(f"""
        v_lshrrev_b32 v{t0}, 4, v0              ; g
        v_and_b32 v{t1}, 15, v0                 ; p
        v_lshlrev_b32 v{t2}, 2, v{t0}           ; 4g
        v_xor_b32 v{t2}, v{t1}, v{t2}           ; p ^ 4g
        v_lshlrev_b32 v{t2}, 4, v{t2}           ; *16
        v_lshl_add_u32 v{t3}, v{t0}, 13, v{t2}  ; g*8192 + swz
        s_lshl_b32 s{sTmp}, s{sWave}, 17        ; 16w*8192
        v_add_u32 v{vWd}, s{sTmp}, v{t3}
        v_lshl_add_u32 v{t3}, v{t0}, 10, v{t2}  ; g*1024 + swz
        s_lshl_b32 s{sTmp}, s{sWave}, 14        ; 16w*1024
        v_add_u32 v{vWoD}, s{sTmp}, v{t3}
        s_waitcnt lgkmcnt(0)
        """)
        self.whead()
        self.srd(16, 42, 58, 511 * 8192 + 256)
        def q1_w(j):
            A(f"s_add_u32 m0, s{sW4096}, {WS1[j] * SLOT}")
            for i in range(4):
                A(f"s_mov_b32 s{sTmp}, {j * 524288 + i * 31744}")
                A.vm_issue(("w", j), f"buffer_load_dwordx4 v{vWd}, s[16:19], s{sTmp} offen offset:{1024*i}{cfg.pw} lds")
        for j in range(8): q1_w(j)
        A(f"""
        s_lshl_b32 s58, s{sB}, 5
        s_add_u32 s58, s58, s{sH}
        s_lshl_b32 s59, s58, 17
        """)
        self.srd(4, 38, 59, 131072); self.srd(8, 40, 59, 131072)
        A(f"s_mov_b32 s98, s59")
        A(f"s_add_u32 s58, s58, 256")
        A(f"s_lshl_b32 s58, s58, 15")
        self.srd(sOB, 52, 58, 32768)
        def issue_tile_ins(n):
            if n >= 32:
                c = n - 32
                L = [(None, f"s_add_u32 m0, s{sW4096}, {kvslot(n) * SLOT}")] + self.hh_ins(c)
                for j in range(4):
                    if j: L.append((None, f"s_add_u32 s{sTmp}, s{sTmp}, 3072"))
                    L.append((("t", n), f"buffer_load_dwordx4 v{vWoD}, s[24:27], s{sTmp} offen offset:{1024*j}{cfg.pwo} lds"))
                return L
            job, m = n >> 4, n & 15
            if m == 0: isV, idx = 0, 0
            elif m == 15: isV, idx = 1, 7
            elif m & 1: isV, idx = 0, (m + 1) // 2
            else: isV, idx = 1, m // 2 - 1
            srd = sKV[(job, isV)]
            L = [(None, f"s_add_u32 m0, s{sW4096}, {kvslot(n) * SLOT}"),
                 ] + self.rot_ins(idx)
            for j in range(4):
                va = vKdma + j if not isV else vVdma
                L.append((("t", n), f"buffer_load_dwordx4 v{va}, s[{srd}:{srd+3}], s{sTmp} offen offset:{1024*j}{nt} lds"))
            return L
        def groups(L):
            i = 0
            while L[i][0] is None: i += 1
            hdr = L[:i]; grp = []; cur = []
            for x in L[i:]:
                cur.append(x)
                if x[0] is not None: grp.append(cur); cur = []
            assert not cur
            return hdr, grp
        def emit(L):
            for tag, s in L:
                if tag is None: A(s)
                else: A.vm_issue(tag, s)
        def issue_tile(n): emit(issue_tile_ins(n))
        issue_tile(0); issue_tile(1)
        A(f"""
        v_and_b32 v{t0}, 31, v0                 ; m
        v_lshrrev_b32 v{t1}, 5, v0              ; hl
        v_and_b32 v{t2}, 15, v0
        v_xor_b32 v{t2}, v{t2}, v{t1}
        v_lshlrev_b32 v{t2}, 4, v{t2}
        v_lshl_add_u32 v{vKrdL}, v{t0}, 8, v{t2}
        """)
        for t in range(1, 8): A(f"v_xor_b32 v{vKrdL+t}, {32*t}, v{vKrdL}")
        for t in range(8): A(f"v_add_u32 v{vKrdH+t}, 65536, v{vKrdL+t}")
        A(f"""
        v_lshrrev_b32 v{t0}, 2, v0
        v_and_b32 v{t0}, 3, v{t0}               ; r
        v_lshrrev_b32 v{t2}, 4, v0
        v_and_b32 v{t2}, 1, v{t2}               ; G&1
        v_lshlrev_b32 v{t2}, 5, v{t2}           ; 32*(G&1)
        v_lshl_add_u32 v{t2}, v{t0}, 8, v{t2}   ; + r*256
        v_lshl_add_u32 v{t2}, v{t0}, 6, v{t2}   ; + 64*r
        v_and_b32 v{t3}, 3, v0                  ; c
        v_lshl_add_u32 v{vVrdL}, v{t3}, 3, v{t2} ; + 8c
        v_lshl_add_u32 v{vVrdL}, v{t1}, 10, v{vVrdL} ; + 4*hl*256
        """)
        for j in range(1, 4): A(f"v_xor_b32 v{vVrdL+j}, {64*j}, v{vVrdL}")
        for j in range(4): A(f"v_add_u32 v{vVrdH+j}, 65536, v{vVrdL+j}")
        A(f"s_mov_b32 s{sThr}, {hex(f2u(cfg.T))}")
        self.stamp()
        for j in range(8):
            A.vm_wait([("w", j)])
            self.barrier()
            if 1 <= j <= 5: issue_tile(j + 1)
        self.srd(12, 46, 98, 131072); self.srd(16, 48, 98, 131072)
        if cfg.fuse:
            self.wo_srd(24, 54)
            self.flag_srd(56)
        vHo = vT + 4
        A(f"v_lshlrev_b32 v{vHo}, 4, v0")
        A(f"v_add_u32 v{vHo}, s{sW4096}, v{vHo}")
        A(f"v_add_u32 v{vHo}, {7*SLOT}, v{vHo}")

        def krd(n, t):
            sl = kvslot(n)
            return (vKrdL + t, sl * SLOT) if sl < 4 else (vKrdH + t, sl * SLOT - 65536)
        def vrd(n, j):
            sl = kvslot(n)
            return (vVrdL + j, sl * SLOT) if sl < 4 else (vVrdH + j, sl * SLOT - 65536)
        def ktile(job, p): return 16 * job + (0 if p == 0 else 2 * p - 1)
        def vtile(job, p): return 16 * job + (15 if p == 7 else 2 * p + 2)

        fcnt = [0]
        def mf_S(job, k):
            n = ktile(job, k >> 1); L = []
            for t in range(8):
                reg, off = krd(n, t)
                L.append(dict(kind="K", reads=[(reg, off + (k & 1) * 8192)], t=t, k=k))
            return L
        def mf_PV(job, k):
            n = vtile(job, k >> 1); L = []
            for u in range(2):
                for j in range(4):
                    reg, off = vrd(n, j)
                    rows = 32 * (k & 1) + 16 * u
                    L.append(dict(kind="V", reads=[(reg, off + rows * 256), (reg, off + (rows + 8) * 256)], u=u, j=j, k=k))
            return L
        def issue_reads(m):
            fi = fcnt[0] % 8; fcnt[0] += 1
            m["fi"] = fi; m["tag"] = ("f", fcnt[0])
            b = vF + 4 * fi
            if m["kind"] == "K":
                reg, off = m["reads"][0]
                A.lg_issue(m["tag"], f"ds_read_b128 v[{b}:{b+3}], v{reg} offset:{off}")
            else:
                for sh, (reg, off) in enumerate(m["reads"]):
                    A.lg_issue(m["tag"], f"ds_read_b64_tr_b16 v[{b+2*sh}:{b+2*sh+1}], v{reg} offset:{off}")
        def issue_mfma(m):
            A.lg_wait(m["tag"])
            b = vF + 4 * m["fi"]
            if m["kind"] == "K":
                k, t = m["k"], m["t"]
                d = vS + 16 * (k & 1)
                c = f"v[{d}:{d+15}]" if t else ("0" if k == 0 else f"v[{vNM}:{vNM+15}]")
                A(f"v_mfma_f32_32x32x16_bf16 v[{d}:{d+15}], v[{b}:{b+3}], v[{vQ+4*t}:{vQ+4*t+3}], {c}")
            else:
                k, u, j = m["k"], m["u"], m["j"]
                d = vO + 16 * j; p = vP + 8 * (k & 1) + 4 * u
                c = "0" if (k == 0 and u == 0) else f"v[{d}:{d+15}]"
                A(f"v_mfma_f32_32x32x16_bf16 v[{d}:{d+15}], v[{b}:{b+3}], v[{p}:{p+3}], {c}")
        def va_soft(k):
            s = vS + 16 * (k & 1); p = vP + 8 * (k & 1); L = []
            for r in range(0, 16, 2):
                L.append(f"v_exp_f32 v{s+r}, v{s+r}")
                L.append(f"v_exp_f32 v{s+r+1}, v{s+r+1}")
                if r >= 2:
                    L.append(f"v_add_f32 v{vL}, v{vL}, v{s+r-2}")
                    L.append(f"v_add_f32 v{vL2}, v{vL2}, v{s+r-1}")
                    L.append(f"v_cvt_pk_bf16_f32 v{p+(r-2)//2}, v{s+r-2}, v{s+r-1}")
            L.append(f"v_add_f32 v{vL}, v{vL}, v{s+14}")
            L.append(f"v_add_f32 v{vL2}, v{vL2}, v{s+15}")
            L.append(f"v_cvt_pk_bf16_f32 v{p+7}, v{s+14}, v{s+15}")
            return L
        def va_max(k):
            s = vS + 16 * (k & 1); L = [f"v_max3_f32 v{vMx}, v{s}, v{s+1}, v{s+2}", f"v_max3_f32 v{vT}, v{s+3}, v{s+4}, v{s+5}"]
            L.append(f"v_max3_f32 v{vMx}, v{vMx}, v{s+6}, v{s+7}")
            L.append(f"v_max3_f32 v{vT}, v{vT}, v{s+8}, v{s+9}")
            L.append(f"v_max3_f32 v{vMx}, v{vMx}, v{s+10}, v{s+11}")
            L.append(f"v_max3_f32 v{vT}, v{vT}, v{s+12}, v{s+13}")
            L.append(f"v_max3_f32 v{vMx}, v{vMx}, v{s+14}, v{s+15}")
            L.append(f"v_max_f32 v{vMx}, v{vMx}, v{vT}")
            if k > 0: L.append(f"v_cmp_lt_f32 vcc, s{sThr}, v{vMx}")
            return L
        def slow(job, k):
            lab = f"SLOW_{job}_{k}"; back = f"BACK_{job}_{k}"
            A(f"s_cbranch_vccnz {lab}")
            A(f"{back}:")
            C = Asm()
            s = vS + 16 * (k & 1); p = vP + 8 * ((k - 1) & 1)
            a, d, al = vT, vT + 1, vT + 2
            C(f"{lab}:")
            C("s_nop 15")
            C(f"""
            v_mov_b32 v{a}, v{vMx}
            v_permlane32_swap_b32 v{vMx}, v{a}
            v_max_f32 v{a}, v{a}, v{vMx}
            v_cmp_lt_f32 vcc, s{sThr}, v{a}
            v_cndmask_b32 v{d}, 0, v{a}, vcc
            v_exp_f32 v{al}, -v{d}
            """)
            for r in range(16): C(f"v_sub_f32 v{s+r}, v{s+r}, v{d}")
            for r in range(16): C(f"v_sub_f32 v{vNM+r}, v{vNM+r}, v{d}")
            C(f"v_mul_f32 v{vL}, v{vL}, v{al}")
            C(f"v_mul_f32 v{vL2}, v{vL2}, v{al}")
            for r in range(64): C(f"v_mul_f32 v{vO+r}, v{vO+r}, v{al}")
            for r in range(8):
                C(f"v_lshlrev_b32 v{a}, 16, v{p+r}")
                C(f"v_and_b32 v{d}, 0xffff0000, v{p+r}")
                C(f"v_mul_f32 v{a}, v{a}, v{al}")
                C(f"v_mul_f32 v{d}, v{d}, v{al}")
                C(f"v_cvt_pk_bf16_f32 v{p+r}, v{a}, v{d}")
            C("s_nop 3")
            C(f"s_branch {back}")
            self.cold.append(C.text())
        def first_max():
            s = vS; a = vT
            A(f"""
            v_mov_b32 v{a}, v{vMx}
            v_permlane32_swap_b32 v{vMx}, v{a}
            v_max_f32 v{a}, v{a}, v{vMx}
            v_mov_b32 v{vL}, 0
            v_mov_b32 v{vL2}, 0
            """)
            for r in range(16): A(f"v_sub_f32 v{s+r}, v{s+r}, v{a}")
            for r in range(16): A(f"v_sub_f32 v{vNM+r}, 0, v{a}")

        def run_step(mfs, valu_at, extras):
            D = cfg.D
            for m in mfs[:D]: issue_reads(m)
            def fill(g):
                for x in valu_at.get(g, []):
                    if callable(x): x()
                    else: A(x)
                for tag, s in extras.get(g, []):
                    if tag is None: A(s)
                    else: A.vm_issue(tag, s)
            fill(-1)
            for i, m in enumerate(mfs):
                issue_mfma(m)
                if i + D < len(mfs): issue_reads(mfs[i + D])
                fill(i)
        def spread(valu_at, L, g0, g1):
            n = g1 - g0 + 1
            for i, x in enumerate(L):
                g = g0 + (i * n) // len(L)
                valu_at.setdefault(g, []).append(x)

        def tiles_after(job, s):
            if job == 0:
                if s == 0: return []
                if s == 1: return [7]
                return [2 * (s - 1) + 6, 2 * (s - 1) + 7]
            else:
                if s == 0: return [22]
                if s == 1: return [23]
                L = [16 + 2 * (s - 1) + 6, 16 + 2 * (s - 1) + 7]
                return [n for n in L if n < (38 if cfg.fuse else 32)]
        def need(job, s):
            if s == 0: return [16 * job]
            if s == 8: return [16 * job + 15]
            return [16 * job + 2 * s - 1, 16 * job + 2 * s]

        for job in range(2):
            for s in range(9):
                A.comment(f"==== job {job} step {s}")
                A.vm_wait([("t", n) for n in need(job, s)])
                self.barrier()
                extras = {}
                tl = tiles_after(job, s)
                if s == 0:
                    lo = 0 if job == 0 else SLOT
                    hi = lo + SLOT
                    for t in range(8):
                        off = (lo if t < 4 else hi) + (t & 3) * 1024
                        A.lg_issue(("q", t), f"ds_read_b128 v[{vQ+4*t}:{vQ+4*t+3}], v{vHo} offset:{off}")
                    for n in tl: emit(issue_tile_ins(n))
                    tl = []
                    A.lg_wait([("q", t) for t in range(8)])
                    if job == 1:
                        for t in range(8):
                            off = (lo if t < 4 else hi) + (t & 3) * 1024
                            A(f"ds_write_b128 v{vHo}, v[{vS+4*t}:{vS+4*t+3}] offset:{off}")
                        A("s_waitcnt lgkmcnt(0)")
                    self.barrier()
                    mfs = mf_S(job, 0) + mf_S(job, 1)
                    va = {}
                    D = cfg.D
                    for m in mfs[:D]: issue_reads(m)
                    for i in range(8):
                        issue_mfma(mfs[i])
                        if i + D < 16: issue_reads(mfs[i + D])
                    for x in va_max(0): A(x)
                    first_max()
                    sm = va_soft(0)
                    spread(va, sm, 8, 13)
                    for i in range(8, 16):
                        issue_mfma(mfs[i])
                        if i + D < 16: issue_reads(mfs[i + D])
                        for x in va.get(i, []): A(x)
                    for x in va_max(1): A(x)
                elif s <= 7:
                    k1, k2 = 2 * s - 1, 2 * s
                    mfs = mf_S(job, k1 + 1) + mf_PV(job, k1 - 1) + mf_S(job, k2 + 1) + mf_PV(job, k2 - 1)
                    va = {}
                    va[-1] = [lambda job=job, k1=k1: slow(job, k1)]
                    sm1 = va_soft(k1)
                    va[-1] += sm1[:8]
                    spread(va, sm1[8:], 0, 11)
                    spread(va, va_max(k2), 12, 15)
                    va.setdefault(15, []).append(lambda job=job, k2=k2: slow(job, k2))
                    spread(va, va_soft(k2), 16, 27)
                    spread(va, va_max(k2 + 1), 28, 31)
                    g = 1
                    for n in tl:
                        hdr, grp = groups(issue_tile_ins(n))
                        extras.setdefault(g, []).extend(hdr); g += 2
                        for x in grp:
                            extras.setdefault(g, []).extend(x); g += 2
                        g += 8
                    assert g - 10 <= 31
                    run_step(mfs, va, extras)
                else:
                    mfs = mf_PV(job, 14) + mf_PV(job, 15)
                    va = {}
                    va[-1] = [lambda job=job: slow(job, 15)]
                    sm = va_soft(15)
                    va[-1] += sm[:8]
                    spread(va, sm[8:], 0, 6)
                    g = 1
                    for n in tl:
                        hdr, grp = groups(issue_tile_ins(n))
                        extras.setdefault(g, []).extend(hdr); g += 1
                        for x in grp:
                            extras.setdefault(g, []).extend(x); g += 1
                        g += 2
                    assert g - 3 <= 15
                    run_step(mfs, va, extras)
                    a, b2 = vT, vT + 1
                    A(f"v_add_f32 v{a}, v{vL}, v{vL2}")
                    A(f"v_mov_b32 v{b2}, v{a}")
                    A(f"v_permlane32_swap_b32 v{a}, v{b2}")
                    A(f"v_add_f32 v{a}, v{a}, v{b2}")
                    A(f"v_rcp_f32 v{a}, v{a}")
                    if job == 1:
                        A(f"v_lshlrev_b32 v{b2}, 4, v0")
                        A(f"s_lshl_b32 s{sTmp}, s{sWave}, 13")
                        A(f"v_add_u32 v{b2}, s{sTmp}, v{b2}")
                        A(f"v_add_u32 v{vT+2}, 4096, v{b2}")
                    for j in range(4):
                        for r in range(16):
                            A(f"v_mul_f32 v{vO+16*j+r}, v{vO+16*j+r}, v{a}")
                        for u in range(2):
                            t = 2 * j + u
                            for r in range(4):
                                A(f"v_cvt_pk_bf16_f32 v{vS+4*t+r}, v{vO+16*j+8*u+2*r}, v{vO+16*j+8*u+2*r+1}")
                            if job == 1:
                                ad = b2 if t < 4 else vT + 2
                                A(f"buffer_store_dwordx4 v[{vS+4*t}:{vS+4*t+3}], v{ad}, s[{sOB}:{sOB+3}], 0 offen offset:{1024*(t&3)}{' sc1' if cfg.fuse else ''}")
        if cfg.fuse: self.barrier()
        else: self.stamp()
        A("s_waitcnt vmcnt(0)")
        if cfg.fuse:
            self.flag_set(56, 1, vT, vT + 1)
        self.stamp()
        self.dump_stamps(0)
        A("s_endpgm")

    def g2(self):
        A = self.A; cfg = self.cfg
        A.ev = {}; A.vm = []; A.lg = []
        A("G2_START:")
        if cfg.g2prio: A(f"s_setprio {cfg.g2prio}")
        sX = [4, 12]; sW = [8, 16]; sOA = 20; sFl = 24; sWo = [8, 44]; sDbg = 40
        if cfg.fuse:
            A("s_load_dwordx2 s[54:55], s[0:1], 32")
            A("s_load_dwordx2 s[56:57], s[0:1], 72")
            A("s_load_dwordx2 s[60:61], s[0:1], 88")
        t0, t1, t2, t3 = gT, gT + 1, gT + 2, gT + 3
        A(f"""
        v_and_b32 v{t0}, 31, v0                 ; q
        v_lshrrev_b32 v{t1}, 5, v0              ; hl
        v_lshlrev_b32 v{t0}, 10, v{t0}
        v_lshl_add_u32 v{t0}, v{t1}, 4, v{t0}
        s_lshl_b32 s{sTmp}, s{sWave}, 15        ; 32w*1024
        v_add_u32 v{gXad}, s{sTmp}, v{t0}
        s_waitcnt lgkmcnt(0)
        s_mul_i32 s58, s{sB}, 114688
        """)
        self.srd(sX[0], 36, 58, 114688); self.srd(sX[1], 44, 58, 114688)
        if cfg.fuse:
            self.flag_srd(sFl)
            A(f"""
            v_and_b32 v{t0}, 3, v0
            v_lshlrev_b32 v{t0}, 4, v{t0}           ; 16*w'
            v_lshrrev_b32 v{t1}, 2, v0
            v_lshl_add_u32 v{t0}, v{t1}, 6, v{t0}   ; + 64*br
            s_and_b32 s{sTmp}, s{sH}, 3
            s_lshl_b32 s{sTmp}, s{sTmp}, 2
            v_mov_b32 v{t1}, 0
            s_cmp_eq_u32 s{sWave}, 0
            s_cselect_b32 s{sTmp2}, 0xff, 0
            s_mov_b32 exec_hi, 0
            s_mov_b32 exec_lo, s{sTmp2}
            """)
            A.vm_issue("z", f"buffer_store_dword v{t1}, v{t0}, s[{sFl}:{sFl+3}], s{sTmp} offen sc1")
            A("s_mov_b64 exec, -1")
        def issue_x(job, j):
            for u in range(4):
                r = gX + 16 * j + 4 * u
                A.vm_issue(("x", job, j), f"buffer_load_dwordx4 v[{r}:{r+3}], v{gXad}, s[{sX[job]}:{sX[job]+3}], 0 offen offset:{128*j+32*u}{cfg.px}")
        for j in range(8): issue_x(0, j)
        A(f"""
        v_lshrrev_b32 v{t0}, 4, v0              ; g
        v_and_b32 v{t1}, 15, v0                 ; p
        v_lshlrev_b32 v{t2}, 2, v{t0}           ; 4g
        v_xor_b32 v{t2}, v{t1}, v{t2}           ; p ^ 4g
        v_lshlrev_b32 v{t2}, 4, v{t2}           ; *16
        v_lshl_add_u32 v{t3}, v{t0}, 13, v{t2}  ; g*8192 + swz
        s_lshl_b32 s{sTmp}, s{sWave}, 17        ; 16w*8192
        v_add_u32 v{gWdma}, s{sTmp}, v{t3}
        v_lshl_add_u32 v{t3}, v{t0}, 10, v{t2}  ; g*1024 + swz
        s_lshl_b32 s{sTmp}, s{sWave}, 14        ; 16w*1024
        v_add_u32 v{gWoDma}, s{sTmp}, v{t3}
        """)
        self.whead()
        self.srd(sW[1], 50, 58, 511 * 8192 + 256)
        A(f"""
        s_lshl_b32 s58, s{sB}, 5
        s_add_u32 s58, s58, s{sH}
        s_lshl_b32 s58, s58, 15
        """)
        self.srd(sOA, 52, 58, 32768)
        if cfg.fuse:
            self.wo_srd(sWo[0], 54); self.wo_srd(sWo[1], 56)
            A(f"""
            s_mov_b32 s{sDbg}, s60
            s_mov_b32 s{sDbg+1}, s61
            s_mov_b32 s{sDbg+2}, 256
            s_mov_b32 s{sDbg+3}, 0x00020000
            s_lshr_b32 s58, s{sH}, 2
            s_lshl_b32 s59, s{sB}, 3
            s_add_u32 s58, s58, s59
            s_lshl_b32 s101, s58, 2              ; group * 4
            """)
        def issue_w(job, j, slot):
            A(f"s_add_u32 m0, s{sW4096}, {slot * SLOT}")
            for i in range(4):
                A(f"s_mov_b32 s{sTmp}, {j * 524288 + i * 31744}")
                A.vm_issue(("w", job, j), f"buffer_load_dwordx4 v{gWdma}, s[{sW[job]}:{sW[job]+3}], s{sTmp} offen offset:{1024*i}{cfg.pw} lds")
        wslot1 = lambda j: [9, 7, 8][j % 3]
        A(f"""
        v_lshrrev_b32 v{t1}, 5, v0              ; hl
        v_lshrrev_b32 v{t0}, 2, v0
        v_and_b32 v{t0}, 3, v{t0}               ; r
        v_lshrrev_b32 v{t2}, 4, v0
        v_and_b32 v{t2}, 1, v{t2}               ; G&1
        v_lshlrev_b32 v{t2}, 5, v{t2}           ; 32*(G&1)
        v_lshl_add_u32 v{t2}, v{t0}, 8, v{t2}   ; + r*256
        v_lshl_add_u32 v{t2}, v{t0}, 6, v{t2}   ; + 64*r
        v_and_b32 v{t3}, 1, v0
        v_lshl_add_u32 v{gWrdA}, v{t3}, 4, v{t2} ; + 16*(c&1)
        v_lshrrev_b32 v{t3}, 1, v0
        v_and_b32 v{t3}, 1, v{t3}
        v_lshl_add_u32 v{gWrdA}, v{t3}, 3, v{gWrdA} ; + 8*(c>>1)
        v_lshl_add_u32 v{gWrdA}, v{t1}, 11, v{gWrdA} ; + 8*hl*256
        v_add_u32 v{gWrdB}, {2*SLOT}, v{gWrdA}
        v_add_u32 v{gWrdA}, {6*SLOT}, v{gWrdA}
        """)
        for j in range(1, 4):
            A(f"v_xor_b32 v{gWrdA+j}, {64*j}, v{gWrdA}")
            A(f"v_xor_b32 v{gWrdB+j}, {64*j}, v{gWrdB}")
        A(f"""
        v_and_b32 v{t3}, 3, v0                  ; c
        v_lshl_add_u32 v{gWo4}, v{t3}, 3, v{t2} ; + 8c
        v_lshl_add_u32 v{gWo4}, v{t1}, 10, v{gWo4} ; + 4*hl*256
        v_add_u32 v{gWo6}, {6*SLOT}, v{gWo4}
        v_add_u32 v{gWo4}, {4*SLOT}, v{gWo4}
        """)
        for j in range(1, 4):
            A(f"v_xor_b32 v{gWo4+j}, {64*j}, v{gWo4}")
            A(f"v_xor_b32 v{gWo6+j}, {64*j}, v{gWo6}")
        A(f"v_lshlrev_b32 v{gHo}, 4, v0")
        A(f"s_lshl_b32 s{sTmp}, s{sWave}, 13")
        A(f"v_add_u32 v{gOad}, s{sTmp}, v{gHo}")
        A(f"v_add_u32 v{gHo}, s{sW4096}, v{gHo}")
        A(f"v_add_u32 v{gHo}, {7*SLOT}, v{gHo}")
        A(f"s_mov_b32 s{sC}, {hex(f2u(CSCALE))}")
        self.stamp()

        def wq_addr(slot):
            return (gWrdB, (slot - 2) * SLOT) if slot < 6 else (gWrdA, (slot - 6) * SLOT)
        def wo_addr(slot):
            if slot < 4: return (gWo0, slot * SLOT)
            if slot < 6: return (gWo4, (slot - 4) * SLOT)
            return (gWo6, (slot - 6) * SLOT)
        def chunk(kind, slot, bregs, first, hook=None):
            reg, base = wq_addr(slot) if kind == "q" else wo_addr(slot)
            frs = [(u, jj) for u in range(4) for jj in range(4)]
            def rd(i):
                u, jj = frs[i]; fi = i % 8
                for sh in range(2):
                    off = base + (16 * u + (4 if kind == "q" else 8) * sh) * 256
                    A.lg_issue(("wf", i), f"ds_read_b64_tr_b16 v[{gF+4*fi+2*sh}:{gF+4*fi+2*sh+1}], v{reg+jj} offset:{off}")
            for i in range(5): rd(i)
            if hook: hook()
            for i in range(16):
                u, jj = frs[i]; fi = i % 8
                if i + 5 < 16: rd(i + 5)
                A.lg_wait(("wf", i))
                c = "0" if (first and u == 0) else f"v[{gA+16*jj}:{gA+16*jj+15}]"
                A(f"v_mfma_f32_32x32x16_bf16 v[{gA+16*jj}:{gA+16*jj+15}], v[{gF+4*fi}:{gF+4*fi+3}], v[{bregs[u]}:{bregs[u]+3}], {c}")
        def convert_q(lo):
            for jj in range(4):
                for r in range(16):
                    A(f"v_mul_f32 v{gA+16*jj+r}, s{sC}, v{gA+16*jj+r}")
                for r in range(0, 16, 2):
                    A(f"v_cvt_pk_bf16_f32 v{gF + 8*jj + r//2}, v{gA+16*jj+r}, v{gA+16*jj+r+1}")
                for u in range(2):
                    t = 2 * jj + u
                    off = lo + (0 if t < 4 else SLOT) + (t & 3) * 1024
                    A(f"ds_write_b128 v{gHo}, v[{gF+4*t}:{gF+4*t+3}] offset:{off}")
            A("s_waitcnt lgkmcnt(0)")
        def xprime(bi):
            for j in range(8):
                if cfg.xb[j] == bi: issue_x(1, j)
        xr = lambda j: [gX + 16 * j + 4 * u for u in range(4)]
        for j in range(8):
            self.barrier()
            A.vm_wait([("x", 0, j)])
            if j == 0 and cfg.fuse:
                A(f"""
                v_mov_b32 v{t0}, 0
                v_mov_b32 v{t1}, 1
                s_cmp_eq_u32 s{sWave}, 0
                s_cselect_b32 s{sTmp2}, 1, 0
                s_mov_b32 exec_hi, 0
                s_mov_b32 exec_lo, s{sTmp2}
                """)
                A.vm_issue("z", f"buffer_atomic_add v{t1}, v{t0}, s[{sDbg}:{sDbg+3}], s101 offen sc1")
                A("s_mov_b64 exec, -1")
            chunk("q", WS1[j], xr(j), j == 0, hook=lambda j=j: xprime(j) if all(cfg.xb[k] != j or k < j for k in range(8)) else 1 / 0)
        for j in range(4): A(f"v_add_u32 v{gWo0+j}, {-4*SLOT & 0xffffffff}, v{gWo4+j}")
        convert_q(0)
        self.barrier()
        issue_w(1, 0, wslot1(0))
        xprime(8)
        self.barrier()
        issue_w(1, 1, wslot1(1)); issue_w(1, 2, wslot1(2))
        xprime(9)
        A.vm_wait([("w", 1, 0)])
        for s in range(1, 9):
            j = s - 1
            self.barrier()
            if j >= 1 and j + 2 <= 7: issue_w(1, j + 2, wslot1(j + 2))
            xprime(9 + s)
            A.vm_wait([("x", 1, j)])
            chunk("q", wslot1(j), xr(j), j == 0)
            if j + 1 <= 7: A.vm_wait([("w", 1, j + 1)])
        convert_q(SLOT)
        self.barrier()
        ring = lambda c: 7 + c % 3
        def issue_wo(br, c, slot):
            A(f"s_add_u32 m0, s{sW4096}, {slot * SLOT}")
            for _, x in self.hh_ins(c): A(x)
            for j in range(4):
                if j: A(f"s_add_u32 s{sTmp}, s{sTmp}, 3072")
                A.vm_issue(("wo", br, c), f"buffer_load_dwordx4 v{gWoDma}, s[{sWo[br]}:{sWo[br]+3}], s{sTmp} offen offset:{1024*j}{cfg.pwo} lds")
        def issue_o(br, hs):
            A(f"s_add_u32 s{sTmp}, s{sH}, {hs}")
            A(f"s_and_b32 s{sTmp}, s{sTmp}, 3")
            A(f"s_lshl_b32 s{sTmp}, s{sTmp}, 15")
            A(f"s_add_u32 s{sTmp2}, s{sTmp}, 4096")
            for t in range(8):
                r = gX + 32 * hs + 4 * t
                A.vm_issue(("o", br, hs, t >> 2), f"buffer_load_dwordx4 v[{r}:{r+3}], v{gOad}, s[{sX[br]}:{sX[br]+3}], s{sTmp if t < 4 else sTmp2} offen offset:{1024*(t&3)} sc1")
        def spin_flags(br, lab):
            A(f"""
            v_mov_b32 v{t0}, {br * 64}
            s_lshl_b32 s{sTmp}, s{sWave}, 4
            s_mov_b32 s{sTmp2}, {cfg.spin}
            {lab}:
            buffer_load_dwordx4 v[{gP}:{gP+3}], v{t0}, s[{sFl}:{sFl+3}], s{sTmp} offen sc1
            s_waitcnt vmcnt(0)
            v_and_b32 v{gP}, v{gP}, v{gP+1}
            v_and_b32 v{gP+2}, v{gP+2}, v{gP+3}
            v_and_b32 v{gP}, v{gP}, v{gP+2}
            v_readfirstlane_b32 s54, v{gP}
            s_sub_u32 s{sTmp2}, s{sTmp2}, 1
            s_cmp_eq_u32 s{sTmp2}, 0
            s_cbranch_scc1 {lab}_X
            s_cmp_eq_u32 s54, 1
            s_cbranch_scc0 {lab}
            {lab}_X:
            """)
            A.vm = []
        def store_partials(br):
            A(f"""
            s_lshl_b32 s58, s{sB}, 2
            s_and_b32 s59, s{sH}, 3
            s_add_u32 s58, s58, s59
            s_lshl_b32 s58, s58, 3
            s_lshr_b32 s59, s{sH}, 2
            s_add_u32 s58, s58, s59
            s_add_u32 s58, s58, {br * 256}
            s_lshl_b32 s58, s58, 15
            s_add_u32 s58, s58, {PART_OFF}
            """)
            self.srd(sOA, 52, 58, 32768)
            A(f"s_movk_i32 s{sTmp2}, 4096")
            for t in range(8):
                jj, gp = t >> 1, t & 1
                for d in range(4):
                    r = gA + 16 * jj + 8 * gp + 2 * d
                    A(f"v_cvt_pk_bf16_f32 v{gF+4*t+d}, v{r}, v{r+1}")
                A.vm_issue(("p", br), f"buffer_store_dwordx4 v[{gF+4*t}:{gF+4*t+3}], v{gOad}, s[{sOA}:{sOA+3}], {'0' if t < 4 else 's%d' % sTmp2} offen offset:{1024*(t&3)}")
        obr = lambda c: [gX + 32 * (c >> 1) + 16 * (c & 1) + 4 * t for t in range(4)]
        if cfg.fuse:
            issue_wo(0, 0, ring(0))
            A(f"""
            s_lshl_b32 s98, s{sB}, 5
            s_and_b32 s99, s{sH}, {~3 & 0xffffffff}
            s_add_u32 s98, s98, s99
            s_lshl_b32 s98, s98, 15                 ; (b*32 + 4*kq) * 32768
            """)
            self.srd(sX[0], 52, 98, 131072)
            A(f"s_add_u32 s98, s98, {256 << 15}")
            self.srd(sX[1], 52, 98, 131072)
        self.barrier()
        for t in range(8):
            off = SLOT + (0 if t < 4 else SLOT) + (t & 3) * 1024
            A.lg_issue(("o", t), f"ds_read_b128 v[{gX+4*t}:{gX+4*t+3}], v{gHo} offset:{off}")
        A(f"v_add_u32 v{t1}, 4096, v{gOad}")
        if cfg.fuse:
            A.lg_wait(("o", 7))
            issue_wo(0, 1, ring(1)); issue_wo(0, 2, ring(2))
        for t in range(8):
            A.lg_wait(("o", t))
            ad = gOad if t < 4 else t1
            A.vm_issue("oa", f"buffer_store_dwordx4 v[{gX+4*t}:{gX+4*t+3}], v{ad}, s[{sOA}:{sOA+3}], 0 offen offset:{1024*(t&3)}{' sc1' if cfg.fuse else ''}")
        if not cfg.fuse:
            for s in range(1, 9):
                self.barrier()
            self.stamp()
            A("s_waitcnt vmcnt(0)")
            self.stamp()
            self.dump_stamps(1)
            A("s_endpgm")
            return
        sched = cfg.sched
        step_of = {c: s for s, L in sched.items() for c in L}
        issue_at = {}
        for c in range(3, 8): issue_at.setdefault(step_of[c - 3] + 1, []).append(c)
        A(f"v_mov_b32 v{t0}, 0")
        A.vm_issue("ic", f"buffer_load_dword v{gP}, v{t0}, s[{sDbg}:{sDbg+3}], s101 offen sc1")
        A.vm_wait([("wo", 0, 0)])
        for s in range(1, 10):
            if s <= 8:
                self.barrier()
            else:
                self.barrier()
            if s != 2:
                for c in issue_at.get(s, []): issue_wo(0, c, ring(c))
            if s == 2:
                A.vm_wait(["ic"])
                A(f"""
                s_mov_b32 s{sTmp2}, {cfg.spin}
                v_mov_b32 v{t0}, 0
                IC_L:
                v_readfirstlane_b32 s54, v{gP}
                s_cmp_eq_u32 s54, 4
                s_cbranch_scc1 IC_X
                s_sub_u32 s{sTmp2}, s{sTmp2}, 1
                s_cmp_eq_u32 s{sTmp2}, 0
                s_cbranch_scc1 IC_X
                buffer_load_dword v{gP}, v{t0}, s[{sDbg}:{sDbg+3}], s101 offen sc1
                s_waitcnt vmcnt(0)
                s_nop 4
                s_branch IC_L
                IC_X:
                """)
                spin_flags(0, "FA_L")
                for hs in range(1, 4): issue_o(0, hs)
                for c in issue_at.get(s, []): issue_wo(0, c, ring(c))
            for c in sched.get(s, []):
                if c >= 2: A.vm_wait([("o", 0, c >> 1, c & 1)])
                chunk("o", ring(c), obr(c), c == 0)
            if s == 1:
                A.vm_wait(["oa"])
                self.flag_set(sFl, 0, t0, t1)
                A.vm.append("fl")
            nxt = [("wo", 0, c) for c in sched.get(s + 1, [])]
            if s == 8: nxt = [("wo", 0, c) for c in range(8) if step_of[c] >= 9]
            if nxt: A.vm_wait(nxt)
        store_partials(0)
        self.barrier()
        issue_wo(1, 6, kvslot(38)); issue_wo(1, 7, 9)
        self.stamp()
        spin_flags(1, "FB_L")
        self.stamp()
        for hs in range(4): issue_o(1, hs)
        bslot = lambda c: kvslot(32 + c) if c < 7 else 9
        for c in range(8):
            A.vm_wait([("o", 1, c >> 1, c & 1)])
            if c == 0:
                self.barrier()
            chunk("o", bslot(c), obr(c), c == 0)
        self.stamp()
        store_partials(1)
        self.stamp()
        A("s_waitcnt vmcnt(0)")
        self.stamp()
        self.dump_stamps(1)
        A("s_endpgm")

    def build(self, name):
        self.prologue(name)
        self.g1(); n1 = self.nbar; s1 = self.nst
        self.nbar = 0; self.nst = 0
        self.g2()
        assert n1 + (2 if self.cfg.fuse else 0) == self.nbar, (n1, self.nbar)
        A = self.A
        A("K_END:")
        A("s_endpgm")
        for c in self.cold: A.raw(c)
        return A.text()

def gen_k3b(A, name, nsplit=8):
    kernel_begin(A, name)
    A(f"""
    s_cmp_ge_u32 s2, 512
    s_cbranch_scc1 K3_END
    s_load_dwordx2 s[36:37], s[0:1], 80     ; out
    s_load_dwordx2 s[52:53], s[0:1], 96     ; ws
    s_lshr_b32 s54, s2, 3
    s_and_b32 s55, s2, 7
    s_lshl_b32 s55, s55, 8
    v_add_u32 v1, s55, v0
    v_lshlrev_b32 v2, 4, v1
    v_lshrrev_b32 v3, 9, v1                 ; w
    v_and_b32 v4, 31, v1
    v_lshl_add_u32 v3, v3, 5, v4            ; q
    v_cmp_gt_u32 vcc, 112, v3
    s_and_saveexec_b64 s[14:15], vcc
    s_cbranch_execz K3_END
    s_waitcnt lgkmcnt(0)
    s_lshl_b32 s58, s54, 18
    s_add_u32 s58, s58, {PART_OFF}
    s_add_u32 s4, s52, s58
    s_addc_u32 s5, s53, 0
    s_mov_b32 s6, {nsplit * 32768}
    s_mov_b32 s7, 0x00020000
    s_mov_b32 s8, s36
    s_mov_b32 s9, s37
    s_mov_b32 s10, {8*112*1024*2}
    s_mov_b32 s11, 0x00020000
    """)
    for k in range(nsplit):
        A(f"s_mov_b32 s12, {32768*k}")
        A(f"buffer_load_dwordx4 v[{8+4*k}:{8+4*k+3}], v2, s[4:7], s12 offen")
    A(f"""
    s_and_b32 s56, s54, 3                   ; nt
    s_lshr_b32 s57, s54, 2
    s_and_b32 s58, s57, 7                   ; b
    s_lshr_b32 s57, s57, 3                  ; br
    s_mul_i32 s58, s58, 112
    v_add_u32 v3, s58, v3                   ; b*112+q
    v_lshlrev_b32 v3, 11, v3                ; *2048 B
    v_lshrrev_b32 v4, 6, v1
    v_and_b32 v4, 7, v4                     ; t
    v_lshlrev_b32 v4, 5, v4                 ; 16*t*2 B
    v_lshrrev_b32 v5, 5, v1
    v_and_b32 v5, 1, v5                     ; hl
    v_lshl_add_u32 v4, v5, 4, v4            ; + 8*hl*2 B
    v_add_u32 v3, v3, v4
    s_lshl_b32 s57, s57, 10                 ; br*512*2
    s_lshl_b32 s56, s56, 8                  ; nt*128*2
    s_add_u32 s56, s56, s57
    v_add_u32 v3, s56, v3
    """)
    acc = 48
    for k in range(nsplit):
        A(f"s_waitcnt vmcnt({nsplit-1-k})")
        for d in range(4):
            r = 8 + 4 * k + d
            if k == 0:
                A(f"v_lshlrev_b32 v{acc+2*d}, 16, v{r}")
                A(f"v_and_b32 v{acc+2*d+1}, 0xffff0000, v{r}")
            else:
                A(f"v_lshlrev_b32 v6, 16, v{r}")
                A(f"v_and_b32 v7, 0xffff0000, v{r}")
                A(f"v_add_f32 v{acc+2*d}, v{acc+2*d}, v6")
                A(f"v_add_f32 v{acc+2*d+1}, v{acc+2*d+1}, v7")
    for d in range(4): A(f"v_cvt_pk_bf16_f32 v{8+d}, v{acc+2*d}, v{acc+2*d+1}")
    A("s_mov_b64 exec, s[14:15]")
    A("v_permlane32_swap_b32 v8, v10")
    A("v_permlane32_swap_b32 v9, v11")
    A("s_and_b64 exec, exec, vcc")
    A("""
    buffer_store_dwordx4 v[8:11], v3, s[8:11], 0 offen
    s_waitcnt vmcnt(0)
    K3_END:
    s_endpgm
    """)

if __name__ == "__main__":
    cfg = Cfg()
    for a in sys.argv[2:]:
        k, v = a.split("="); setattr(cfg, k, eval(v))
    G = Gen(cfg)
    body = G.build("att_kernel")
    L = [("att_kernel", (256, 1, 1), (512, 1, 1), 163840)]
    descs = [kernel_desc("att_kernel", NVGPR)]
    if getattr(cfg, "full", False) and cfg.fuse:
        A3 = Asm(); gen_k3b(A3, "red_kernel")
        body += A3.text()
        L += [("red_kernel", (512, 1, 1), (256, 1, 1), 0)]
        descs += [kernel_desc("red_kernel", 64)]
    elif getattr(cfg, "full", False):
        import gen2
        A2 = Asm(); gen2.gen_k2(A2, "proj_kernel")
        A3 = Asm(); gen2.gen_k3(A3, "red_kernel")
        body += A2.text() + A3.text()
        L += [("proj_kernel", (256, 1, 1), (256, 1, 1), 131072), ("red_kernel", (1024, 1, 1), (256, 1, 1), 0)]
        descs += [kernel_desc("proj_kernel", 192), kernel_desc("red_kernel", 32)]
    open(sys.argv[1], "w").write(build_file(L, body, descs))
    print("nops inserted:", G.A.nops, "lines:", len(G.A.l), "barriers", G.nbar, "stamps", G.nst)
```
